```python
import torch

def _softmax(x, axis=-1):
    return torch.softmax(x, dim=axis)
def _gelu(x):
    return torch.nn.functional.gelu(x, approximate="tanh")
def _silu(x):
    return torch.nn.functional.silu(x)
def _sigmoid(x):
    return torch.sigmoid(x)
def _layernorm(x, axis=-1, eps=1e-5):
    m = x.mean(dim=axis, keepdim=True)
    v = x.var(dim=axis, keepdim=True, unbiased=False)
    return (x - m) / torch.sqrt(v + eps)
def _scatter_add(tgt, idx, src, axis=0):
    return tgt.clone().index_add_(axis, idx, src)
def _segment_sum(src, seg, n):
    out = torch.zeros((n,) + src.shape[1:], dtype=src.dtype)
    return out.index_add_(0, seg, src)
def _pad(x, pw):
    flat = tuple(v for pair in reversed(pw) for v in pair)
    return torch.nn.functional.pad(x, flat)

kernel_name = 'concat_heads__gqa_block_cached__gqa_block_cached__decode'

def setup_inputs():

    _w = (lambda a: (lambda t: t.to(torch.bfloat16) if t.is_floating_point() else t)(torch.as_tensor(a)))
    def _A_setup():
        B, Sq, D = 1, 1, 576
        Hq, Hkv, Sk, Dh = 32, 16, 8192, 128
        assert Hq % Hkv == 0, (Hq, Hkv)
        return {
            "x": _w((lambda *s: torch.randn(*s, dtype=torch.bfloat16) * 0.8)(B, Sq, D)),
            "k_cache": _w((lambda *s: torch.randn(*s, dtype=torch.bfloat16) * 0.8)(B, Hkv, Sk, Dh)),
            "v_cache": _w((lambda *s: torch.randn(*s, dtype=torch.bfloat16) * 0.05)(B, Hkv, Sk, Dh)),
            "wq": _w((lambda *s: torch.randn(*s, dtype=torch.bfloat16) * 0.8)(D, Hq * Dh) * (D ** -0.5)),
            "wo": _w((lambda *s: torch.randn(*s, dtype=torch.bfloat16) * 0.05)(Hq * Dh, D) * ((Hq * Dh) ** -0.5)),
        }
    _A_in = _A_setup()

    def _B_setup():
        B, Sq, D = 1, 1, 576
        Hq, Hkv, Sk, Dh = 32, 16, 8192, 128
        assert Hq % Hkv == 0, (Hq, Hkv)
        return {
            "x": _w((lambda *s: torch.randn(*s, dtype=torch.bfloat16) * 0.8)(B, Sq, D)),
            "k_cache": _w((lambda *s: torch.randn(*s, dtype=torch.bfloat16) * 0.8)(B, Hkv, Sk, Dh)),
            "v_cache": _w((lambda *s: torch.randn(*s, dtype=torch.bfloat16) * 0.05)(B, Hkv, Sk, Dh)),
            "wq": _w((lambda *s: torch.randn(*s, dtype=torch.bfloat16) * 0.8)(D, Hq * Dh) * (D ** -0.5)),
            "wo": _w((lambda *s: torch.randn(*s, dtype=torch.bfloat16) * 0.05)(Hq * Dh, D) * ((Hq * Dh) ** -0.5)),
        }
    _B_in = _B_setup()

    return {
        "A_x": _A_in["x"],
        "A_k_cache": _A_in["k_cache"],
        "A_v_cache": _A_in["v_cache"],
        "A_wq": _A_in["wq"],
        "A_wo": _A_in["wo"],
        "B_x": _B_in["x"],
        "B_k_cache": _B_in["k_cache"],
        "B_v_cache": _B_in["v_cache"],
        "B_wq": _B_in["wq"],
        "B_wo": _B_in["wo"],
    }

def reference(A_x, A_k_cache, A_v_cache, A_wq, A_wo, B_x, B_k_cache, B_v_cache, B_wq, B_wo):
    def _A_ref(x, k_cache, v_cache, wq, wo):
        B, Sq, D = x.shape
        Hq, Dh = 32, 128
        Hkv = k_cache.shape[1]
        rep = Hq // Hkv
        q = (lambda x, *d: x.permute(*d))((x @ wq).reshape(B, Sq, Hq, Dh), 0, 2, 1, 3)
        k = (lambda x, n, axis: torch.repeat_interleave(x, n, dim=axis))(k_cache, rep, axis=1)
        v = (lambda x, n, axis: torch.repeat_interleave(x, n, dim=axis))(v_cache, rep, axis=1)
        scores = torch.einsum("bhqd,bhkd->bhqk", q, k) * (Dh ** -0.5)
        p = _softmax(scores, axis=-1)
        o = torch.einsum("bhqk,bhkd->bhqd", p, v)
        return (lambda x, *d: x.permute(*d))(o, 0, 2, 1, 3).reshape(B, Sq, Hq * Dh) @ wo

    def _B_ref(x, k_cache, v_cache, wq, wo):
        B, Sq, D = x.shape
        Hq, Dh = 32, 128
        Hkv = k_cache.shape[1]
        rep = Hq // Hkv
        q = (lambda x, *d: x.permute(*d))((x @ wq).reshape(B, Sq, Hq, Dh), 0, 2, 1, 3)
        k = (lambda x, n, axis: torch.repeat_interleave(x, n, dim=axis))(k_cache, rep, axis=1)
        v = (lambda x, n, axis: torch.repeat_interleave(x, n, dim=axis))(v_cache, rep, axis=1)
        scores = torch.einsum("bhqd,bhkd->bhqk", q, k) * (Dh ** -0.5)
        p = _softmax(scores, axis=-1)
        o = torch.einsum("bhqk,bhkd->bhqd", p, v)
        return (lambda x, *d: x.permute(*d))(o, 0, 2, 1, 3).reshape(B, Sq, Hq * Dh) @ wo

    a = _A_ref(A_x, A_k_cache, A_v_cache, A_wq, A_wo)
    b = _B_ref(B_x, B_k_cache, B_v_cache, B_wq, B_wo)
    return torch.concatenate([a, b], axis=-1)
```

```python
KNAME = "concat_heads__gqa_block_cached__gqa_block_cached__decode_kernel"
class Asm:
    def __init__(self):
        self.lines = []
    def __call__(self, s):
        for l in s.split("\n"):
            l = l.strip()
            if l: self.lines.append("    " + l if not l.endswith(":") else l)
    def label(self, n): self.lines.append(n + ":")
    def text(self): return "\n".join(self.lines) + "\n"

def wrap(body, grid, block, lds, vgpr=256, agpr=0, sgpr=102, header=""):
    acc = (vgpr + 3)//4*4
    nfv = vgpr if agpr == 0 else acc + agpr
    return f"""{header}; @launch grid=({grid},1,1) block=({block},1,1) lds={lds}
.amdgcn_target "amdgcn-amd-amdhsa--gfx950"
.text
.globl {KNAME}
.p2align 8
.type {KNAME},@function
{KNAME}:
{body}
.section .rodata,"a"
.p2align 6
.amdhsa_kernel {KNAME}
  .amdhsa_next_free_vgpr {nfv}
  .amdhsa_next_free_sgpr {sgpr}
  .amdhsa_accum_offset {acc}
  .amdhsa_group_segment_fixed_size 0
  .amdhsa_kernarg_size 104
  .amdhsa_user_sgpr_count 2
  .amdhsa_user_sgpr_kernarg_segment_ptr 1
  .amdhsa_system_sgpr_workgroup_id_x 1
  .amdhsa_float_denorm_mode_32 3
.end_amdhsa_kernel
"""
```

```python
import re

def regs_of(tok):
    tok = tok.strip()
    neg = tok.lstrip('-|').rstrip('|')
    m = re.fullmatch(r'([vsa])\[(\d+):(\d+)\]', neg)
    if m:
        return [(m.group(1), i) for i in range(int(m.group(2)), int(m.group(3))+1)]
    m = re.fullmatch(r'([vsa])(\d+)', neg)
    if m:
        return [(m.group(1), int(m.group(2)))]
    if neg == 'vcc': return [('s','vcc')]
    if neg == 'exec': return [('s','exec')]
    if neg == 'm0': return [('s','m0')]
    return []

TRANS = ('v_exp_f32','v_log_f32','v_rcp_f32','v_rsq_f32','v_sqrt_f32')

class Ins:
    def __init__(self, text):
        self.text = text
        t = text.split(';')[0].strip()
        self.is_label = t.endswith(':')
        self.op = t.split()[0] if t else ''
        rest = t[len(self.op):].strip()
        ops = [o.strip() for o in rest.split(',')] if rest else []
        self.mods = ''
        if ops:
            parts = ops[-1].split()
        m = re.search(r'\s(quad_perm:|row_|offen|offset|sc1|nt|bound_ctrl|bank_mask|op_sel|neg_|glc|lds|clamp)', ' '+rest)
        if m:
            self.mods = (' '+rest)[m.start():]
            rest = (' '+rest)[:m.start()].strip()
        ops = [o.strip() for o in rest.split(',')] if rest else []
        self.ops = ops
        op = self.op
        self.valu = op.startswith('v_') and not op.startswith('v_mfma')
        self.mfma = op.startswith('v_mfma')
        self.trans = any(op.startswith(x) for x in TRANS)
        self.dpp = ('quad_perm' in self.mods) or ('row_' in self.mods and re.search(r'row_(shr|shl|ror|mirror|half_mirror|bcast|newbcast)', self.mods) is not None)
        self.perm = op.startswith('v_permlane')
        self.rdlane = op.startswith('v_readfirstlane') or op.startswith('v_readlane')
        self.vmem = op.startswith('buffer_') or op.startswith('global_')
        self.vstore = op.startswith('buffer_store') or op.startswith('global_store')
        self.ds = op.startswith('ds_')
        self.salu = op.startswith('s_')
        self.w = []; self.r = []
        R = [regs_of(o) for o in ops]
        if self.mfma:
            self.w = R[0]; self.a = R[1]; self.b = R[2]; self.c = R[3]
            self.r = R[1]+R[2]+R[3]
        elif self.perm:
            self.w = R[0]+R[1]; self.r = R[0]+R[1]
        elif self.valu:
            self.w = R[0]; self.r = sum(R[1:], [])
            if op.startswith('v_cndmask') and len(ops) == 3: self.r += [('s','vcc')]
            if self.dpp: self.r += R[0]
            if op.startswith('v_fmac') or op.startswith('v_mac'): self.r += R[0]
            if op.startswith('v_cmp') and not op.startswith('v_cmpx'):
                pass
        elif self.vmem:
            if self.vstore:
                self.r = sum(R, [])
            elif 'atomic' in op:
                self.r = sum(R, [])
            else:
                self.w = R[0]; self.r = sum(R[1:], [])
        elif self.ds:
            if op.startswith('ds_read'):
                self.w = R[0]; self.r = sum(R[1:], [])
            else:
                self.r = sum(R, [])
        elif self.salu:
            if op.startswith('s_cmp') or op.startswith('s_waitcnt') or op.startswith('s_cbranch') or op in ('s_branch','s_barrier','s_nop','s_endpgm','s_setprio','s_sleep'):
                self.r = sum(R, [])
            else:
                self.w = R[0] if R else []; self.r = sum(R[1:], [])
        self.states = 1
        if op == 's_nop': self.states = int(ops[0]) + 1
        if self.is_label or not op: self.states = 0
        self.wide_store = self.vstore and ('x3' in op or 'x4' in op)

def ov(a, b):
    return bool(set(a) & set(b))

def need(p, c):
    n = 0
    pv = [x for x in p.w if x[0] in 'va']
    ps = [x for x in p.w if x[0] == 's']
    if p.valu:
        if ov(pv, c.r):
            if c.dpp or c.perm or c.mfma: n = max(n, 2)
            if c.rdlane: n = max(n, 1)
            if p.trans and c.valu and not c.trans: n = max(n, 1)
        if ov(ps, c.r):
            if c.valu: n = max(n, 2)
            if c.rdlane: n = max(n, 4)
            if c.vmem: n = max(n, 5)
    if p.mfma:
        if c.mfma:
            if ov(p.w, c.a) or ov(p.w, c.b): n = max(n, 8)
            if ov(p.w, c.c) and p.w != c.c: n = max(n, 6)
            if ov(p.w, c.w) and not (p.w == c.c): n = max(n, 8)
        elif c.valu or c.vmem or c.ds:
            if ov(p.w, c.r) or ov(p.w, c.w): n = max(n, 8)
        if c.valu and ov(p.c, c.w): n = max(n, 3)
    if p.wide_store:
        data = regs_of(p.ops[0])
        if ov(data, c.w): n = max(n, 2)
    return n

def _req(hist, c, lookback):
    dist = 0; req = 0
    for p in reversed(hist):
        if dist >= lookback: break
        req = max(req, need(p, c) - dist)
        dist += p.states
    return req

def pad(lines, lookback=12):
    ins = [Ins(l.strip()) for l in lines]
    labpos = {c.op[:-1]: i for i, c in enumerate(ins) if c.is_label}
    seen = set()
    out = []; hists = [[]]; pending = {}
    total = 0
    def trim(h): return h[-lookback:]
    for i, (l, c) in enumerate(zip(lines, ins)):
        if c.is_label:
            name = c.op[:-1]; seen.add(name)
            hists = hists + pending.pop(name, [])
            out.append(l); continue
        if not c.op:
            out.append(l); continue
        req = max([_req(h, c, lookback) for h in hists] + [0])
        isbr = c.op.startswith('s_cbranch') or c.op == 's_branch'
        if isbr and c.ops[0] in seen:
            j = labpos[c.ops[0]] + 1; dist = 1; k = 0
            while j < len(ins) and dist < lookback:
                d = ins[j]
                if d.op and not d.is_label:
                    for h in hists:
                        req = max(req, _req(h, d, lookback) - dist)
                    dist += d.states
                    if d.op == 's_branch' or d.op == 's_endpgm': break
                j += 1
        if req > 0:
            nop = Ins(f"s_nop {req-1}")
            out.append(f"    s_nop {req-1}"); total += req
            hists = [trim(h + [nop]) for h in hists]
        hists = [trim(h + [c]) for h in hists]
        uniq = {}
        for h in hists: uniq[tuple(id(x) for x in h)] = h
        hists = list(uniq.values())
        if isbr and c.ops[0] not in seen:
            pending.setdefault(c.ops[0], []).extend([list(h) for h in hists])
        if c.op == 's_branch' or c.op == 's_endpgm':
            hists = []
        out.append(l)
    return out, total
```

```python
import math, sys
from asmlib import wrap
from hz import pad

QBOX, MLBOX, OBOX, PBOX, STAMP = 0x10000, 0x20000, 0x30000, 0x70000, 0x100000
L_QP, L_QB, L_F, L_OP, L_OSTR = 0, 2048, 2560, 4096, 1040
LDS_BYTES = L_OP + 8*L_OSTR
RETRY = 1 << 16

sW, sS, sKvh, sG, sT, sStr, sCnt = 30, 31, 33, 34, 35, 68, 69
SK, SV, SWQ, SX, SWO, SWS, SDBG, SOUT = 36, 40, 44, 48, 52, 56, 60, 64
sA = 70
sSelLo, sSelHi, sC = 72, 73, 74
sQslot, sQg, sMLs, sMLg, sOs, sOg, sPs, sPg, sOutO = 75, 76, 77, 78, 79, 80, 81, 82, 83
sExO, sExP, sExOut, sExF, sTmp2 = 84, 86, 88, 90, 92
sT0, sT1 = 3, 32
sTag, sEoff, sCi = 60, 61, 101
sPk0, sPk1, sPk2, sUp0, sUp1 = 62, 63, 98, 99, 100
sCm = 26
sStamp0 = 94

vTid, vL, vK, vLin, vWq, vX = 0, 1, 2, 3, 4, 5
vM = 6
vXd = 10
vOW, vOR, vFR, vOP, vOG, vWo0, vWo1, vPP, vOut, vFW = 14, 15, 16, 17, 18, 19, 20, 21, 22, 23
vBA, vBB = 24, 28
vA0, vA1 = 32, 36
vO = 40
vD0, vD1 = 44, 48
vS = 52
vMc, vLs, vTg, vMx = 68, 69, 70, 71
vT = 72
vWQB = 88
vKV = 112
vStamp = 240
NVGPR = 244

def srd(n): return f"s[{n}:{n+3}]"
def vr(n, k=4): return f"v[{n}:{n+k-1}]"

class G:
    def __init__(self, R=3, NB1=2, NQG=8, NML=52, kfl="nt", vfl="nt", wqfl="nt", wofl="nt", stamps=False,
                 qk_per_step=2, pv_per_step=3, wo_early=3, consw=0, kfront=1, tlbwarm=False):
        self.__dict__.update(locals()); del self.__dict__['self']
        self.L = []
        self.ops = []; self.done = -1
        self.nlab = 0; self.nstamp = 0; self.stamp_names = []

    def a(self, s):
        for l in s.split("\n"):
            l = l.split(';')[0].strip()
            if l: self.L.append(l if l.endswith(":") else "    " + l)
    def lab(self, p="L"):
        self.nlab += 1; return f"{p}_{self.nlab}"
    def vm(self, name, text, cond=None):
        self.a(text); self.ops.append((name, cond))
    def wait(self, name, cond=None, extra=""):
        idx = max(i for i, o in enumerate(self.ops) if o[0] == name)
        if idx <= self.done:
            if extra: self.a(f"s_waitcnt {extra}")
            return
        n = sum(1 for o in self.ops[idx+1:] if o[1] is None or o[1] == cond)
        assert n <= 63
        self.a(f"s_waitcnt vmcnt({n}) {extra}")
        if cond is None: self.done = idx
    def stamp(self, name):
        if not self.stamps: return
        k = self.nstamp; self.nstamp += 1; self.stamp_names.append(name)
        assert k < 31
        self.a(f"""s_memrealtime s[94:95]
        s_waitcnt lgkmcnt(0)
        v_writelane_b32 v{vStamp}, s94, {k}""")
    def vm_masked(self, w, mask, ops):
        self.a(f"s_cmp_eq_u32 s{sW}, {w}\ns_cselect_b64 exec, {mask}, 0")
        for name, text in ops: self.vm(name, text)
        self.a("s_mov_b64 exec, -1")
    def only(self, w):
        l = self.lab("SKIP")
        self.a(f"s_cmp_lg_u32 s{sW}, {w}\ns_cbranch_scc1 {l}")
        return l

    def mfma(self, d, a, b, c):
        cc = "0" if c is None else vr(c)
        self.a(f"v_mfma_f32_16x16x32_bf16 {vr(d)}, {vr(a)}, {vr(b)}, {cc}")
    def dpp(self, op, d, s0, s1, ctl, bc=False):
        t = f"{op}_dpp v{d}, v{s0}" + (f", v{s1}" if s1 is not None else "") + f" {ctl} row_mask:0xf bank_mask:0xf" + (" bound_ctrl:0" if bc else "")
        self.a(t)
    def allred_rows(self, op, x, t):
        self.a(f"""v_mov_b32 v{t}, v{x}
        v_permlane16_swap_b32 v{x}, v{t}
        {op} v{x}, v{x}, v{t}
        v_mov_b32 v{t}, v{x}
        v_permlane32_swap_b32 v{x}, v{t}
        {op} v{x}, v{x}, v{t}""")

    def pack(self, r):
        self.a(f"""v_perm_b32 v{r}, v{r}, v{r+3}, s{sPk0}
        v_perm_b32 v{r+1}, v{r+1}, v{r+3}, s{sPk1}
        v_perm_b32 v{r+2}, v{r+2}, v{r+3}, s{sPk2}
        v_mov_b32 v{r+3}, s{sTag}""")
    def unpack(self, rs):
        for r in rs: self.a(f"v_perm_b32 v{r+3}, v{r+1}, v{r}, s{sUp0}")
        for r in rs: self.a(f"v_perm_b32 v{r+3}, v{r+2}, v{r+3}, s{sUp1}")
    def check_retry(self, tags, reload_fn):
        top, done = self.lab("CHK"), self.lab("OK")
        self.a(f"{top}:")
        self.a(f"v_cmp_ne_u32 vcc, s{sTag}, v{tags[0]}")
        if len(tags) == 1:
            self.a(f"s_cbranch_vccz {done}")
        else:
            prs = [sCm, sCm+2, sTmp2]
            for k, t in enumerate(tags[1:]): self.a(f"v_cmp_ne_u32_e64 s[{prs[k]}:{prs[k]+1}], s{sTag}, v{t}")
            if len(tags) == 4:
                self.a(f"s_or_b64 s[{prs[1]}:{prs[1]+1}], s[{prs[1]}:{prs[1]+1}], s[{prs[2]}:{prs[2]+1}]")
                self.a(f"s_or_b64 s[{prs[0]}:{prs[0]+1}], s[{prs[0]}:{prs[0]+1}], s[{prs[1]}:{prs[1]+1}]")
            self.a(f"s_or_b64 vcc, vcc, s[{prs[0]}:{prs[0]+1}]")
            self.a(f"s_cbranch_scc0 {done}")
        self.a(f"""s_cmp_eq_u32 s{sCnt}, 0
        s_cbranch_scc1 {done}
        s_sub_u32 s{sCnt}, s{sCnt}, 1
        s_mov_b64 exec, vcc""")
        reload_fn()
        self.a(f"""s_mov_b64 exec, -1
        s_waitcnt vmcnt(0)
        s_branch {top}
        {done}:""")

    def item(self, n):
        if n < 0: return f"wq{n+6}"
        return f"it{n}"
    def issue(self, n):
        R = self.R
        if n < 64:
            k = n & 31
            if k % 4 == 0 and n > 0:
                if k == 0: self.a(f"s_mov_b32 s{sT}, 0")
                else: self.a(f"s_add_u32 s{sT}, s{sT}, s{sStr}")
            reg = vKV + 4*k
            if n < 32:
                self.vm(self.item(n), f"buffer_load_dwordx4 {vr(reg)}, v{vK}, {srd(SK)}, s{sT} offen offset:{(k%4)*1024} {self.kfl}")
            else:
                self.vm(self.item(n), f"buffer_load_dwordx4 {vr(reg)}, v{vLin}, {srd(SV)}, s{sT} offen offset:{(k%4)*1024} {self.vfl}")
        else:
            k = n - 64
            va = vWo0 if k < 4 else vWo1
            self.vm(self.item(n), f"buffer_load_dwordx4 {vr(vKV+4*k)}, v{va}, {srd(SWO)}, 0 offen offset:{(k%4)*1152} {self.wofl}")

    def build_A(self, dst, rep):
        for i in range(4): self.a(f"v_and_b32 v{dst+i}, v{rep}, v{vM+i}")

    def q_mfma(self, t):
        A = vA0 if t % 2 == 0 else vA1
        rep = vT + (t % 2)
        sel = sSelLo if t % 2 == 0 else sSelHi
        self.a(f"v_perm_b32 v{rep}, v{vXd + t//2}, v{vXd + t//2}, s{sel}")
        self.build_A(A, rep)
        self.mfma(vD0, A, vWQB + 4*t, None if t == 0 else vD0)

    def qk_mfma(self, u):
        D = vD0 if u % 2 == 0 else vD1
        self.mfma(D, vKV + 8*u, vBA, None)
        self.mfma(D, vKV + 8*u + 4, vBB, D)
    def qk_fin(self, us):
        for u in us:
            D = vD0 if u % 2 == 0 else vD1
            self.dpp("v_add_f32", vS+u, D+1, D, "quad_perm:[1,1,1,1]")
            self.dpp("v_add_f32", D+2, D+3, D+2, "quad_perm:[0,1,3,3]")
        for u in us:
            D = vD0 if u % 2 == 0 else vD1
            self.dpp("v_add_f32", vS+u, D+2, vS+u, "quad_perm:[2,2,2,2]")
        for u in us:
            if u == 0: pass
            elif u == 1: self.a(f"v_max_f32 v{vMx}, v{vS}, v{vS+1}")
            else: self.a(f"v_max_f32 v{vMx}, v{vMx}, v{vS+u}")

    def softmax_max(self):
        t = vT
        self.dpp("v_mov_b32", vMc, vMx, None, "quad_perm:[0,0,0,0]")
        self.dpp("v_max_f32", vMc, vMc, vMc, "row_half_mirror")
        self.allred_rows("v_max_f32", vMc, t)
        self.a(f"v_mul_f32 v{vMc}, s{sC}, v{vMc}")
    def softmax_p(self, us):
        for j, u in enumerate(us):
            self.a(f"v_fma_f32 v{vS+u}, v{vS+u}, s{sC}, -v{vMc}")
        for j, u in enumerate(us):
            self.dpp("v_exp_f32", vT+j, vS+u, None, "quad_perm:[0,0,0,0]")
        for j, u in enumerate(us):
            self.a(f"v_cvt_pk_bf16_f32 v{vS+u}, v{vT+j}, v{vT+j}")
            if u == 0: self.a(f"v_mov_b32 v{vLs}, v{vT+j}")
            else: self.a(f"v_add_f32 v{vLs}, v{vLs}, v{vT+j}")
    def ml_publish(self):
        self.dpp("v_add_f32", vLs, vLs, vLs, "row_half_mirror")
        self.allred_rows("v_add_f32", vLs, vT)
        self.a(f"v_mov_b32 v{vTg}, s{sTag}\nv_lshlrev_b32 v{vT}, 7, v{vL}\ns_mov_b64 exec, 0x101")
        self.vm("mlpub", f"buffer_store_dwordx3 v[{vMc}:{vTg}], v{vT}, {srd(SWS)}, s{sMLs} offen sc1")
        self.a("s_mov_b64 exec, -1")
    def pv(self, j):
        A = vA0 if j % 2 == 0 else vA1
        P = vS + (j >> 1)
        if j % 2 == 0:
            self.a(f"v_and_b32 v{A}, v{P}, v{vM}\nv_and_b32 v{A+1}, v{P}, v{vM+1}")
            self.dpp("v_and_b32", A+2, P, vM+2, "row_shr:4", True)
            self.dpp("v_and_b32", A+3, P, vM+3, "row_shr:4", True)
        else:
            self.dpp("v_and_b32", A, P, vM, "row_shl:4", True)
            self.dpp("v_and_b32", A+1, P, vM+1, "row_shl:4", True)
            self.a(f"v_and_b32 v{A+2}, v{P}, v{vM+2}\nv_and_b32 v{A+3}, v{P}, v{vM+3}")
        return lambda: self.mfma(vO, A, vKV + 4*j, None if j == 0 else vO)

    def wave_allred(self, op, x, t):
        self.dpp(op, x, x, x, "quad_perm:[1,0,3,2]")
        self.dpp(op, x, x, x, "quad_perm:[2,3,0,1]")
        self.dpp(op, x, x, x, "row_half_mirror")
        self.dpp(op, x, x, x, "row_ror:8")
        self.allred_rows(op, x, t)

    def gen(self):
        a = self.a; R = self.R
        C = (128 ** -0.5) * math.log2(math.e)
        import struct
        Cbits = struct.unpack("<I", struct.pack("<f", C))[0]
        a(f"""
        s_cmp_ge_u32 s2, 256
        s_cbranch_scc1 L_end
        s_load_dwordx16 s[4:19], s[0:1], 0
        s_load_dwordx8 s[20:27], s[0:1], 64
        s_load_dwordx2 s[28:29], s[0:1], 96
        """)
        if self.stamps: a("s_memrealtime s[96:97]")
        a(f"""
        v_lshrrev_b32 v{vT}, 6, v0
        v_and_b32 v{vL}, 63, v0
        v_readfirstlane_b32 s{sW}, v{vT}
        s_lshr_b32 s{sS}, s2, 5
        s_and_b32 s{sKvh}, s2, 15
        s_and_b32 s{sG}, s2, 31
        v_lshrrev_b32 v{vT+1}, 4, v{vL}            ; l>>4
        v_and_b32 v{vT+2}, 8, v{vL}
        v_lshrrev_b32 v{vT+2}, 1, v{vT+2}
        v_or_b32 v{vT+3}, v{vT+1}, v{vT+2}          ; grp
        v_mul_u32_u24 v{vT+4}, 48, v{vT}
        v_mad_u32_u24 v{vT+4}, v{vT+3}, 6, v{vT+4}  ; r0
        v_lshlrev_b32 v{vX}, 1, v{vT+4}
        v_and_b32 v{vT+5}, 7, v{vL}
        v_lshlrev_b32 v{vT+5}, 4, v{vT+5}           ; (l&7)*16
        v_lshl_or_b32 v{vWq}, v{vT+4}, 13, v{vT+5}
        s_lshr_b32 s{sT0}, s2, 7                   ; s>>2
        s_mul_i32 s{sT1}, s{sT0}, 0x240000
        s_mul_i32 s{sT0}, s{sT0}, 576
        s_lshl_b32 s{sT}, s{sKvh}, 9
        s_add_u32 s{sT1}, s{sT1}, s{sT}
        s_and_b32 s{sT}, s{sS}, 3
        s_lshl_b32 s{sT}, s{sT}, 7
        s_add_u32 s{sT1}, s{sT1}, s{sT}
        s_mov_b32 s{SX+2}, 576
        s_mov_b32 s{SX+3}, 0x20000
        s_mov_b32 s{SWQ+2}, {287*8192+128}
        s_mov_b32 s{SWQ+3}, 0x20000
        s_mov_b32 s{sStr}, 0x2000
        s_lshl_b32 s{sTag}, s{sKvh}, 21
        s_lshl_b32 s{sEoff}, s{sS}, 18
        s_add_u32 s{sTag}, s{sTag}, s{sEoff}
        s_lshl_b32 s{sEoff}, s{sW}, 12
        s_add_u32 s{sTag}, s{sTag}, s{sEoff}
        s_sub_u32 s{SK+2}, 0x40000, s{sEoff}
        s_mov_b32 s{SK+3}, 0x20000
        v_and_b32 v{vK}, 12, v{vL}
        v_or_b32 v{vK}, v{vK}, v{vT+1}
        v_lshlrev_b32 v{vK}, 2, v{vK}
        v_and_or_b32 v{vK}, v{vL}, 3, v{vK}
        v_lshlrev_b32 v{vK}, 4, v{vK}
        s_mov_b32 s{sT}, 0
        s_bitcmp1_b32 s2, 4
        s_waitcnt lgkmcnt(0)
        s_cselect_b64 s[6:7], s[16:17], s[6:7]
        s_cselect_b64 s[4:5], s[14:15], s[4:5]
        s_cselect_b64 s[10:11], s[20:21], s[10:11]
        s_cselect_b64 s[8:9], s[18:19], s[8:9]
        s_cselect_b64 s[12:13], s[22:23], s[12:13]
        s_cselect_b32 s{sEoff}, 0x100, 0
        s_add_u32 s{SK}, s6, s{sTag}
        s_addc_u32 s{SK+1}, s7, 0
        """)
        for n in range(self.kfront): self.issue(n)
        a(f"""
        s_add_u32 s{SX}, s4, s{sT0}
        s_addc_u32 s{SX+1}, s5, 0
        s_add_u32 s{SWQ}, s10, s{sT1}
        s_addc_u32 s{SWQ+1}, s11, 0
        """)
        self.vm("x", f"buffer_load_dwordx3 {vr(vXd,3)}, v{vX}, {srd(SX)}, 0 offen")
        for t in range(6):
            if t == 0: so = "0"
            elif t == 1: so = f"s{sStr}"
            else:
                a(f"s_add_u32 s{sT0}, s{sStr if t == 2 else sT0}, s{sStr}"); so = f"s{sT0}"
            self.vm(f"wq{t}", f"buffer_load_dwordx4 {vr(vWQB+4*t)}, v{vWq}, {srd(SWQ)}, {so} offen {self.wqfl}")
        if self.stamps: a(f"v_writelane_b32 v{vStamp}, s96, 31")
        a(f"""
        s_add_u32 s{SV}, s8, s{sTag}
        s_addc_u32 s{SV+1}, s9, 0
        s_mov_b32 s{SV+2}, s{SK+2}
        s_mov_b32 s{SV+3}, 0x20000
        s_load_dword s{sTag}, s[28:29], s{sEoff}
        s_mul_i32 s{sT0}, s{sKvh}, {256*1152}
        s_mul_i32 s{sT1}, s{sS}, {32*1152}
        s_add_u32 s{sT0}, s{sT0}, s{sT1}
        s_add_u32 s{SWO}, s12, s{sT0}
        s_addc_u32 s{SWO+1}, s13, 0
        s_mov_b32 s{SWO+2}, {32*1152}
        s_mov_b32 s{SWO+3}, 0x20000
        """)
        if self.tlbwarm:
            self.vm("tw0", f"buffer_load_dword v{vT+14}, off, {srd(SV)}, 0")
            self.vm("tw1", f"buffer_load_dword v{vT+15}, off, {srd(SWO)}, 0")
        a(f"""
        s_mov_b32 s{SWS}, s28
        s_mov_b32 s{SWS+1}, s29
        s_mov_b32 s{SWS+2}, 0x200000
        s_mov_b32 s{SWS+3}, 0x20000
        s_mov_b32 s{sStr}, 0x8000
        v_lshlrev_b32 v{vLin}, 4, v{vL}
        s_mov_b32 s{sA}, 0x0f0f0f0f
        s_mov_b32 s{sA+1}, 0x0f0f0f0f
        v_mov_b32 v{vT+12}, 0xffff
        v_mov_b32 v{vT+13}, 0
        v_lshlrev_b64 v[{vT+12}:{vT+13}], v{vLin}, v[{vT+12}:{vT+13}]
        s_mov_b32 s{sSelLo}, 0x01000100
        s_mov_b32 s{sSelHi}, 0x03020302
        v_cndmask_b32_e64 v{vM}, 0, v{vT+12}, s[{sA}:{sA+1}]
        v_cndmask_b32_e64 v{vM+1}, 0, v{vT+13}, s[{sA}:{sA+1}]
        v_cndmask_b32_e64 v{vM+2}, v{vT+12}, 0, s[{sA}:{sA+1}]
        v_cndmask_b32_e64 v{vM+3}, v{vT+13}, 0, s[{sA}:{sA+1}]
        s_lshl_b32 s{sQslot}, s{sG}, 3
        s_add_u32 s{sQslot}, s{sQslot}, s{sS}
        s_lshl_b32 s{sQslot}, s{sQslot}, 8
        s_add_u32 s{sQslot}, s{sQslot}, {QBOX}
        s_mov_b32 s{sPk0}, 0x07060501
        s_mov_b32 s{sPk1}, 0x07060502
        s_mov_b32 s{sPk2}, 0x07060503
        s_mov_b32 s{sCnt}, {RETRY}
        """)
        a(f"""v_mov_b32 v{vWo0}, v{vT+3}
        v_mov_b32 v{vWo1}, v{vT+5}
        v_mov_b32 v{vOW}, v{vT+1}""")
        self.stamp("pre")

        NB1, NQG = self.NB1, self.NQG
        NQ = NQG + R
        tasks = {n: [] for n in range(0, 80)}
        T = lambda n, f: tasks[n].append(f)
        kf = self.kfront
        for t in range(6): T(max(kf, kf + t + R - 6), lambda t=t: self.q_mfma(t))
        nqp = kf + R - 1
        NB1 = max(NB1, nqp); NQG = max(NQG, NB1+1); NQ = NQG + R
        def qpart():
            a(f"""
            v_permlane32_swap_b32 v{vD0}, v{vD0+2}
            v_permlane32_swap_b32 v{vD0+1}, v{vD0+3}
            v_lshlrev_b32 v{vT+2}, 1, v{vWo1}            ; (l&7)*32
            v_and_b32 v{vT+3}, 1, v{vOW}
            v_lshl_or_b32 v{vT+2}, v{vT+3}, 4, v{vT+2}
            v_lshrrev_b32 v{vT+3}, 1, v{vOW}
            v_lshl_or_b32 v{vT+2}, v{vT+3}, 3, v{vT+2}
            s_lshl_b32 s{sT0}, s{sW}, 8
            """)
            self.dpp("v_add_f32", vD0, vD0+2, vD0, "row_ror:8")
            self.dpp("v_add_f32", vD0+1, vD0+3, vD0+1, "row_ror:8")
            a(f"""v_add_u32 v{vT+2}, s{sT0}, v{vT+2}
            s_mov_b32 exec_lo, 0x00ff00ff
            s_mov_b32 exec_hi, 0x00ff00ff
            ds_write_b64 v{vT+2}, v[{vD0}:{vD0+1}] offset:{L_QP}
            s_mov_b64 exec, -1""")
        T(nqp, qpart)
        def bar1():
            a("s_waitcnt lgkmcnt(0)")
            a(f"s_mul_i32 s{sTag}, s{sTag}, 1664525")
            a(f"s_add_u32 s{sTag}, s{sTag}, 1013904223")
            a("s_barrier")
            self.stamp("bar1")
            l = self.only(0)
            a("s_mov_b64 exec, 0xffff")
            for w in range(6): a(f"ds_read_b128 {vr(vWQB+4*w)}, v{vLin} offset:{L_QP+256*w}")
            for k, (x, y) in enumerate([(0,1),(2,3),(4,5),(0,2),(0,4)]):
                if k < 3: a(f"s_waitcnt lgkmcnt({4-2*k})")
                for h in (0, 2):
                    a(f"v_pk_add_f32 v[{vWQB+4*x+h}:{vWQB+4*x+h+1}], v[{vWQB+4*x+h}:{vWQB+4*x+h+1}], v[{vWQB+4*y+h}:{vWQB+4*y+h+1}]")
            self.pack(vWQB)
            a(f"{l}:")
            self.vm_masked(0, "0xffff", [("qpub", f"buffer_store_dwordx4 {vr(vWQB)}, v{vLin}, {srd(SWS)}, s{sQslot} offen sc1")])
        T(NB1, bar1)
        def setup1():
            a(f"""
            s_mov_b32 s{sUp0}, 0x0c04000c
            s_mov_b32 s{sUp1}, 0x04020100
            s_mov_b32 s{SOUT}, s24
            s_mov_b32 s{SOUT+1}, s25
            s_mov_b32 s{SOUT+2}, 2304
            s_mov_b32 s{SOUT+3}, 0x20000
            s_mov_b32 s{sC}, {Cbits:#x}
            s_lshl_b32 s{sQg}, s{sG}, 11
            s_add_u32 s{sMLg}, s{sQg}, {MLBOX}
            s_add_u32 s{sQg}, s{sQg}, {QBOX}
            s_lshl_b32 s{sT0}, s{sS}, 3
            s_add_u32 s{sT0}, s{sT0}, s{sW}
            s_lshl_b32 s{sT0}, s{sT0}, 4
            s_add_u32 s{sMLs}, s{sMLg}, s{sT0}
            s_lshl_b32 s{sT0}, s{sG}, 13
            s_add_u32 s{sT0}, s{sT0}, {OBOX}
            s_lshl_b32 s{sT1}, s{sS}, 10
            s_add_u32 s{sOg}, s{sT0}, s{sT1}
            s_lshl_b32 s{sT1}, s{sW}, 10
            s_add_u32 s{sOs}, s{sT0}, s{sT1}
            s_lshl_b32 s{sT1}, s{sS}, 7
            s_add_u32 s{sOs}, s{sOs}, s{sT1}
            s_lshl_b32 s{sCi}, s{sS}, 4
            s_add_u32 s{sCi}, s{sCi}, s{sKvh}
            s_lshr_b32 s{sT0}, s{sG}, 4
            s_mul_i32 s{sT0}, s{sT0}, 72
            s_add_u32 s{sT1}, s{sT0}, s{sCi}
            s_lshl_b32 s{sOutO}, s{sT1}, 4
            s_lshl_b32 s{sPg}, s{sT1}, 12
            s_add_u32 s{sPg}, s{sPg}, {PBOX}
            s_lshl_b32 s{sT0}, s{sT0}, 12
            s_lshl_b32 s{sT1}, s{sW}, 15
            s_add_u32 s{sT0}, s{sT0}, s{sT1}
            s_lshl_b32 s{sT1}, s{sKvh}, 3
            s_add_u32 s{sT1}, s{sT1}, s{sS}
            s_lshl_b32 s{sT1}, s{sT1}, 5
            s_add_u32 s{sT0}, s{sT0}, s{sT1}
            s_add_u32 s{sPs}, s{sT0}, {PBOX}
            s_mov_b32 s{sExO}, 0x01010101
            s_mov_b32 s{sExO+1}, 0x01010101
            s_mov_b32 s{sExP}, 0x00ff00ff
            s_mov_b32 s{sT1}, 0x100000
            s_cmp_eq_u32 s{sW}, 7
            s_cselect_b32 s{sExP+1}, s{sExP}, 0
            s_cselect_b32 s{sT1}, 0x80, s{sT1}
            s_mov_b32 s{sExOut}, 0x00030003
            s_mov_b32 s{sExOut+1}, 0x00030003
            s_lshl_b32 s{sT0}, s{sS}, 3
            s_lshl_b64 s[{sExF}:{sExF+1}], 0xff, s{sT0}
            """)
            a(f"""
            v_lshl_or_b32 v{vOG}, v{vWo1}, 3, 0              ; (l&7)*128
            v_lshl_or_b32 v{vOG}, v{vWo0}, 4, v{vOG}          ; + slot*16
            v_lshlrev_b32 v{vPP}, 8, v{vWo1}                 ; (l&7)*4096
            v_and_b32 v{vT}, 1, v{vOW}                       ; (l>>4)&1
            v_lshl_or_b32 v{vPP}, v{vT}, 4, v{vPP}
            v_lshrrev_b32 v{vT+1}, 1, v{vOW}                 ; l>>5
            v_lshl_or_b32 v{vPP}, v{vT+1}, 15, v{vPP}
            v_and_b32 v{vOut}, 1, v{vL}
            v_lshl_add_u32 v{vOut}, v{vOut}, 2, v{vOW}
            v_lshlrev_b32 v{vOut}, 1, v{vOut}
            v_lshrrev_b32 v{vFW}, 2, v{vWo1}                 ; (l&7)*4
            s_lshr_b32 s{sT0}, s{sW}, 2
            s_lshl_b32 s{sT0}, s{sT0}, 5
            v_add_u32 v{vFR}, s{sT0}, v{vFW}
            v_and_b32 v{vOP}, 0x38, v{vL}
            v_lshlrev_b32 v{vOP}, 1, v{vOP}                  ; (l>>3)*16
            v_mul_u32_u24 v{vOR}, {L_OSTR//16}, v{vWo1}       ; (l&7)*1040
            v_add_u32 v{vOR}, v{vOR}, v{vOP}
            s_lshl_b32 s{sT0}, s{sW}, 7
            v_add_u32 v{vOR}, s{sT0}, v{vOR}
            v_and_b32 v{vT+2}, 15, v{vL}
            v_lshlrev_b32 v{vOW}, 5, v{vT+2}
            v_lshl_or_b32 v{vOW}, v{vT}, 4, v{vOW}
            v_lshl_or_b32 v{vOW}, v{vT+1}, 9, v{vOW}
            s_mul_i32 s{sT0}, s{sW}, {L_OSTR}
            v_add_u32 v{vOW}, s{sT0}, v{vOW}
            v_mul_u32_u24 v{vWo0}, {4*1152}, v{vWo0}
            v_add_u32 v{vWo0}, v{vWo0}, v{vWo1}
            s_lshl_b32 s{sT0}, s{sW}, 7
            v_add_u32 v{vWo0}, s{sT0}, v{vWo0}
            v_add_u32 v{vWo1}, s{sT1}, v{vWo0}
            v_and_b32 v{vX}, 0xff, v{vK}
            v_lshrrev_b32 v{vT}, 1, v{vK}
            v_and_b32 v{vT}, 0x100, v{vT}
            v_or_b32 v{vX}, v{vX}, v{vT}
            """)
        T(NB1+1, setup1)
        assert NQG >= NB1+1
        qg = [f"buffer_load_dwordx4 {vr(vWQB+4*k)}, v{vLin}, {srd(SWS)}, s{sQg} offen offset:{1024*k} sc1" for k in range(2)]
        def t_qg():
            self.vm_masked(1, "-1", [("qg0", qg[0]), ("qg1", qg[1])])
        T(NQG, t_qg)
        def t_q():
            self.wait("qg1")
            l = self.only(1)
            self.stamp("qchk")
            self.check_retry([vWQB+3, vWQB+7], lambda: a("\n".join(qg)))
            self.stamp("qok")
            self.unpack([vWQB, vWQB+4])
            a(f"""v_pk_add_f32 v[{vWQB}:{vWQB+1}], v[{vWQB}:{vWQB+1}], v[{vWQB+4}:{vWQB+5}]
            v_pk_add_f32 v[{vWQB+2}:{vWQB+3}], v[{vWQB+2}:{vWQB+3}], v[{vWQB+6}:{vWQB+7}]
            v_lshlrev_b32 v{vT+2}, 3, v{vL}
            v_cvt_pk_bf16_f32 v{vT}, v{vWQB}, v{vWQB+1}
            v_cvt_pk_bf16_f32 v{vT+1}, v{vWQB+2}, v{vWQB+3}
            ds_write_b64 v{vT+2}, v[{vT}:{vT+1}] offset:{L_QB}
            s_waitcnt lgkmcnt(0)
            {l}:
            s_barrier""")
            self.stamp("bar2")
            a(f"""ds_read_b128 {vr(vBB)}, v{vX} offset:{L_QB}
            s_waitcnt lgkmcnt(0)""")
            for i in range(4): a(f"v_cndmask_b32_e64 v{vBA+i}, 0, v{vBB+i}, s[{sA}:{sA+1}]")
            for i in range(4): a(f"v_cndmask_b32_e64 v{vBB+i}, v{vBB+i}, 0, s[{sA}:{sA+1}]")
        T(NQ, t_q)
        u = 0; n = NQ
        while u < 16:
            avail = (n - R + 1) // 2
            us = list(range(u, min(16, avail, u + (self.qk_per_step if n > NQ else 1))))
            if us:
                def f(us=us):
                    for x in us: self.qk_mfma(x)
                    self.qk_fin(us)
                T(n, f); u = us[-1] + 1
            n += 1
        nsm = n - 1
        assert nsm == 31 + R, nsm
        T(nsm, self.softmax_max)
        T(nsm, lambda: self.stamp("smax"))
        T(nsm, lambda: self.softmax_p([0,1,2,3]))
        T(nsm+1, lambda: self.softmax_p([4,5,6,7,8,9]))
        T(nsm+2, lambda: self.softmax_p([10,11,12,13,14,15]))
        T(nsm+2, self.ml_publish)
        j = 0; n = nsm + 3
        pvlast = None
        while j < 32:
            avail = n - R - 32 + 1
            js = list(range(j, min(32, avail, j + self.pv_per_step)))
            if js:
                def f(js=js):
                    pend = None
                    for x in js:
                        m = self.pv(x)
                        if pend: pend()
                        pend = m
                    pend()
                T(n, f); j = js[-1] + 1
            n += 1
        nlast = n - 1
        assert nlast == 63 + R
        NML = self.NML
        mg = [f"buffer_load_dwordx3 {vr(vWQB+4*k,3)}, v{vLin}, {srd(SWS)}, s{sMLg} offen offset:{1024*k} sc1" for k in range(2)]
        def mlg():
            self.vm_masked(2, "-1", [("mlg0", mg[0]), ("mlg", mg[1])])
        def t_ml():
            mlg()
        T(NML, t_ml)
        def t_mlchk():
            self.wait("mlg")
            l = self.only(2)
            self.stamp("mlchk")
            self.check_retry([vWQB+2, vWQB+6], lambda: a("\n".join(mg)))
            m0, l0, m1, l1 = vWQB, vWQB+1, vWQB+4, vWQB+5
            x0, x1 = vWQB+8, vWQB+9
            a(f"v_mov_b32 v{x0}, v{m0}\nv_mov_b32 v{x1}, v{m1}")
            self.wave_allred2("v_max_f32", x0, x1)
            a(f"""v_sub_f32 v{m0}, v{m0}, v{x0}
            v_sub_f32 v{m1}, v{m1}, v{x1}
            v_exp_f32 v{m0}, v{m0}
            v_exp_f32 v{m1}, v{m1}
            s_nop 0
            v_mul_f32 v{x0}, v{m0}, v{l0}
            v_mul_f32 v{x1}, v{m1}, v{l1}""")
            self.wave_allred2("v_add_f32", x0, x1)
            a(f"""v_rcp_f32 v{x0}, v{x0}
            v_rcp_f32 v{x1}, v{x1}
            s_nop 0
            v_mul_f32 v{m0}, v{m0}, v{x0}
            v_mul_f32 v{m1}, v{m1}, v{x1}
            s_mov_b64 exec, s[{sExF}:{sExF+1}]
            ds_write_b32 v{vFW}, v{m0} offset:{L_F}
            ds_write_b32 v{vFW}, v{m1} offset:{L_F+32}
            s_mov_b64 exec, -1
            {l}:""")
        T(NML+R, t_mlchk)
        assert NML + R < nlast and NML > nsm + 3

        nthr = 64 + self.wo_early
        seq = [self.item(k) for k in range(kf)] + [f"wq{t}" for t in range(6)] + [self.item(k) for k in range(kf, 72)]
        for n in range(kf, nlast+1):
            if n - R < 64: self.wait(seq[n + 6 - R])
            if n < nthr: self.issue(n)
            if n == nlast: self.stamp("vlast")
            for f in tasks[n]: f()
        for n in range(nthr, 72): self.issue(n)
        a(f"""ds_write_b128 v{vOW}, {vr(vO)} offset:{L_OP}
        s_waitcnt lgkmcnt(0)
        s_barrier""")
        self.stamp("bar3")
        a(f"""ds_read_b128 {vr(vT)}, v{vOR} offset:{L_OP}
        ds_read_b32 v{vT+4}, v{vFR} offset:{L_F}
        s_waitcnt lgkmcnt(0)""")
        for r in range(4): a(f"v_mul_f32 v{vT+r}, v{vT+r}, v{vT+4}")
        for ctl in ("quad_perm:[1,0,3,2]", "quad_perm:[2,3,0,1]", "row_half_mirror"):
            for r in range(4): self.dpp("v_add_f32", vT+r, vT+r, vT+r, ctl)
        self.pack(vT)
        a(f"s_mov_b64 exec, s[{sExO}:{sExO+1}]")
        self.vm("opub", f"buffer_store_dwordx4 {vr(vT)}, v{vOP}, {srd(SWS)}, s{sOs} offen sc1")
        a("s_mov_b64 exec, -1")
        g0 = vT + 8
        og = f"buffer_load_dwordx4 {vr(g0)}, v{vOG}, {srd(SWS)}, s{sOg} offen sc1"
        self.vm("og", og)
        self.stamp("opub")
        a("s_waitcnt vmcnt(0)")
        self.stamp("og1")
        self.check_retry([g0+3], lambda: a(og))
        self.stamp("ogok")
        self.unpack([g0])
        for ctl in ("quad_perm:[1,0,3,2]", "quad_perm:[2,3,0,1]", "row_half_mirror"):
            for r in range(4): self.dpp("v_add_f32", g0+r, g0+r, g0+r, ctl)
        for r in range(4): a(f"v_cvt_pk_bf16_f32 v{g0+r}, v{g0+r}, v{g0+r}")
        pend = None
        for i in range(4):
            A = vA0 if i % 2 == 0 else vA1
            self.build_A(A, g0+i)
            if pend: pend()
            def m(i=i, A=A):
                self.mfma(vD0, A, vKV + 4*i, None if i == 0 else vD0)
                self.mfma(vD1, A, vKV + 16 + 4*i, None if i == 0 else vD1)
            pend = m
        pend()
        for r in range(4): a(f"v_permlane32_swap_b32 v{vD0+r}, v{vD1+r}")
        for r in range(4): self.dpp("v_add_f32", vD0+r, vD1+r, vD0+r, "row_ror:8")
        self.pack(vD0)
        a(f"s_mov_b64 exec, s[{sExP}:{sExP+1}]")
        self.vm("ppub", f"buffer_store_dwordx4 {vr(vD0)}, v{vPP}, {srd(SWS)}, s{sPs} offen sc1")
        a("s_mov_b64 exec, -1")
        self.stamp("ppub")
        a(f"""s_cmp_lg_u32 s{sW}, {self.consw}
        s_cbranch_scc1 L_fin
        s_cmp_ge_u32 s{sCi}, 72
        s_cbranch_scc1 L_fin""")
        p0 = vKV + 32
        def pg():
            for t in range(4): a(f"buffer_load_dwordx4 {vr(p0+4*t)}, v{vLin}, {srd(SWS)}, s{sPg} offen offset:{t*1024} sc1")
        pg()
        a("s_waitcnt vmcnt(0)")
        self.stamp("pg1")
        self.check_retry([p0+3, p0+7, p0+11, p0+15], pg)
        self.stamp("pgok")
        self.unpack([p0, p0+4, p0+8, p0+12])
        for (x, y) in [(0,1),(2,3),(0,2)]:
            for h in (0, 2):
                a(f"v_pk_add_f32 v[{p0+4*x+h}:{p0+4*x+h+1}], v[{p0+4*x+h}:{p0+4*x+h+1}], v[{p0+4*y+h}:{p0+4*y+h+1}]")
        a(f"""v_permlane32_swap_b32 v{p0}, v{p0+2}
        v_permlane32_swap_b32 v{p0+1}, v{p0+3}
        v_add_f32 v{p0}, v{p0}, v{p0+2}
        v_add_f32 v{p0+1}, v{p0+1}, v{p0+3}
        v_permlane16_swap_b32 v{p0}, v{p0+1}
        v_add_f32 v{p0}, v{p0}, v{p0+1}""")
        for ctl in ("row_ror:8", "row_ror:4", "quad_perm:[2,3,0,1]"):
            self.dpp("v_add_f32", p0, p0, p0, ctl)
        a(f"""v_cvt_pk_bf16_f32 v{p0}, v{p0}, v{p0}
        s_mov_b64 exec, s[{sExOut}:{sExOut+1}]
        buffer_store_short v{p0}, v{vOut}, {srd(SOUT)}, s{sOutO} offen
        s_cmp_lg_u32 s{sCi}, 0
        s_cbranch_scc1 L_fin2
        v_mov_b32 v{vT}, s{sTag}
        s_mov_b64 exec, 1
        buffer_store_dword v{vT}, off, {srd(SWS)}, s{sEoff} sc1
        L_fin2:
        s_mov_b64 exec, -1""")
        a("L_fin:")
        if self.stamps:
            self.stamp("end")
            a(f"""s_lshl_b32 s{sT0}, s2, 3
            s_add_u32 s{sT0}, s{sT0}, s{sW}
            s_lshl_b32 s{sT0}, s{sT0}, 7
            s_add_u32 s{sT0}, s{sT0}, {STAMP}
            v_lshlrev_b32 v{vT}, 2, v{vL}
            s_mov_b32 exec_hi, 0
            buffer_store_dword v{vStamp}, v{vT}, {srd(SWS)}, s{sT0} offen
            s_waitcnt vmcnt(0)""")
        a("L_end:\ns_endpgm")
        lines, nn = pad(self.L)
        self.nops = nn
        return "\n".join(lines) + "\n"

    def wave_allred2(self, op, x, y):
        for ctl in ("quad_perm:[1,0,3,2]", "quad_perm:[2,3,0,1]", "row_half_mirror", "row_ror:8"):
            self.dpp(op, x, x, x, ctl); self.dpp(op, y, y, y, ctl)
        t, u = vT, vT+1
        for sw in ("v_permlane16_swap_b32", "v_permlane32_swap_b32"):
            self.a(f"""v_mov_b32 v{t}, v{x}
            v_mov_b32 v{u}, v{y}
            {sw} v{x}, v{t}
            {sw} v{y}, v{u}
            {op} v{x}, v{x}, v{t}
            {op} v{y}, v{y}, v{u}""")

def header():
    ref = open("concat_heads__gqa_block_cached__gqa_block_cached__decode.s.ref").read().split("\n")
    out = []
    for l in ref:
        if l.startswith("; @launch"): break
        out.append(l)
    return "\n".join(out) + "\n"

def gen(**kw):
    g = G(**kw)
    body = g.gen()
    txt = wrap(body, 256, 512, LDS_BYTES, vgpr=NVGPR, header=header())
    return txt, g

if __name__ == "__main__":
    kw = eval(sys.argv[2]) if len(sys.argv) > 2 else {}
    txt, g = gen(**kw)
    open(sys.argv[1], "w").write(txt)
    print("nops", g.nops, "lines", txt.count("\n"), g.stamp_names)
```

```python
import math, sys
from asmlib import wrap
from hz import pad

QBOX, MLBOX, OBOX, PBOX, STAMP = 0x10000, 0x20000, 0x30000, 0x70000, 0x100000
L_QP, L_QB, L_F, L_OP, L_OSTR = 0, 2048, 2560, 4096, 1040
LDS_BYTES = L_OP + 8*L_OSTR
RETRY = 1 << 16

sW, sS, sKvh, sG, sT, sStr, sCnt = 30, 31, 33, 34, 35, 68, 69
SK, SV, SWQ, SX, SWO, SWS, SDBG, SOUT = 36, 40, 44, 48, 52, 56, 60, 64
sA = 70
sSelLo, sSelHi, sC = 72, 73, 74
sQslot, sQg, sMLs, sMLg, sOs, sOg, sPs, sPg, sOutO = 75, 76, 77, 78, 79, 80, 81, 82, 83
sExO, sExP, sExOut, sExF, sTmp2 = 84, 86, 88, 90, 92
sT0, sT1 = 3, 32
sTag, sEoff, sCi = 60, 61, 101
sPk0, sPk1, sPk2, sUp0, sUp1 = 62, 63, 98, 99, 100
sCm = 26
sStamp0 = 94

vTid, vL, vK, vLin, vWq, vX = 0, 1, 2, 3, 4, 5
vM = 6
vXd = 10
vOW, vOR, vFR, vOP, vOG, vWo0, vWo1, vPP, vOut, vFW = 14, 15, 16, 17, 18, 19, 20, 21, 22, 23
vBA, vBB = 24, 28
vA0, vA1 = 32, 36
vO = 40
vD0, vD1 = 44, 48
vS = 52
vMc, vLs, vTg, vMx = 68, 69, 70, 71
vT = 72
vWQB = 88
vKV = 112
vStamp = 240
NVGPR = 244

def srd(n): return f"s[{n}:{n+3}]"
def vr(n, k=4): return f"v[{n}:{n+k-1}]"

class G:
    def __init__(self, R=3, NB1=2, NQG=8, NML=52, kfl="nt", vfl="nt", wqfl="nt", wofl="nt", stamps=False,
                 qk_per_step=2, pv_per_step=3, wo_early=3, consw=0, kfront=1, tlbwarm=False, amp=None):
        self.__dict__.update(locals()); del self.__dict__['self']
        self.L = []
        self.ops = []; self.done = -1
        self.nlab = 0; self.nstamp = 0; self.stamp_names = []

    def a(self, s):
        for l in s.split("\n"):
            l = l.split(';')[0].strip()
            if l: self.L.append(l if l.endswith(":") else "    " + l)
    def lab(self, p="L"):
        self.nlab += 1; return f"{p}_{self.nlab}"
    def vm(self, name, text, cond=None):
        self.a(text); self.ops.append((name, cond))
    def wait(self, name, cond=None, extra=""):
        idx = max(i for i, o in enumerate(self.ops) if o[0] == name)
        if idx <= self.done:
            if extra: self.a(f"s_waitcnt {extra}")
            return
        n = sum(1 for o in self.ops[idx+1:] if o[1] is None or o[1] == cond)
        assert n <= 63
        self.a(f"s_waitcnt vmcnt({n}) {extra}")
        if cond is None: self.done = idx
    def stamp(self, name):
        if self.amp and self.amp[0] == name: self.a("s_memrealtime s[22:23]")
        if not self.stamps: return
        k = self.nstamp; self.nstamp += 1; self.stamp_names.append(name)
        assert k < 31
        self.a(f"""s_memrealtime s[94:95]
        s_waitcnt lgkmcnt(0)
        v_writelane_b32 v{vStamp}, s94, {k}""")
    def vm_masked(self, w, mask, ops):
        self.a(f"s_cmp_eq_u32 s{sW}, {w}\ns_cselect_b64 exec, {mask}, 0")
        for name, text in ops: self.vm(name, text)
        self.a("s_mov_b64 exec, -1")
    def only(self, w):
        l = self.lab("SKIP")
        self.a(f"s_cmp_lg_u32 s{sW}, {w}\ns_cbranch_scc1 {l}")
        return l

    def mfma(self, d, a, b, c):
        cc = "0" if c is None else vr(c)
        self.a(f"v_mfma_f32_16x16x32_bf16 {vr(d)}, {vr(a)}, {vr(b)}, {cc}")
    def dpp(self, op, d, s0, s1, ctl, bc=False):
        t = f"{op}_dpp v{d}, v{s0}" + (f", v{s1}" if s1 is not None else "") + f" {ctl} row_mask:0xf bank_mask:0xf" + (" bound_ctrl:0" if bc else "")
        self.a(t)
    def allred_rows(self, op, x, t):
        self.a(f"""v_mov_b32 v{t}, v{x}
        v_permlane16_swap_b32 v{x}, v{t}
        {op} v{x}, v{x}, v{t}
        v_mov_b32 v{t}, v{x}
        v_permlane32_swap_b32 v{x}, v{t}
        {op} v{x}, v{x}, v{t}""")

    def pack(self, r):
        self.a(f"""v_perm_b32 v{r}, v{r}, v{r+3}, s{sPk0}
        v_perm_b32 v{r+1}, v{r+1}, v{r+3}, s{sPk1}
        v_perm_b32 v{r+2}, v{r+2}, v{r+3}, s{sPk2}
        v_mov_b32 v{r+3}, s{sTag}""")
    def unpack(self, rs):
        for r in rs: self.a(f"v_perm_b32 v{r+3}, v{r+1}, v{r}, s{sUp0}")
        for r in rs: self.a(f"v_perm_b32 v{r+3}, v{r+2}, v{r+3}, s{sUp1}")
    def check_retry(self, tags, reload_fn):
        top, done = self.lab("CHK"), self.lab("OK")
        self.a(f"{top}:")
        self.a(f"v_cmp_ne_u32 vcc, s{sTag}, v{tags[0]}")
        if len(tags) == 1:
            self.a(f"s_cbranch_vccz {done}")
        else:
            prs = [sCm, sCm+2, sTmp2]
            for k, t in enumerate(tags[1:]): self.a(f"v_cmp_ne_u32_e64 s[{prs[k]}:{prs[k]+1}], s{sTag}, v{t}")
            if len(tags) == 4:
                self.a(f"s_or_b64 s[{prs[1]}:{prs[1]+1}], s[{prs[1]}:{prs[1]+1}], s[{prs[2]}:{prs[2]+1}]")
                self.a(f"s_or_b64 s[{prs[0]}:{prs[0]+1}], s[{prs[0]}:{prs[0]+1}], s[{prs[1]}:{prs[1]+1}]")
            self.a(f"s_or_b64 vcc, vcc, s[{prs[0]}:{prs[0]+1}]")
            self.a(f"s_cbranch_scc0 {done}")
        self.a(f"""s_cmp_eq_u32 s{sCnt}, 0
        s_cbranch_scc1 {done}
        s_sub_u32 s{sCnt}, s{sCnt}, 1
        s_mov_b64 exec, vcc""")
        reload_fn()
        self.a(f"""s_mov_b64 exec, -1
        s_waitcnt vmcnt(0)
        s_branch {top}
        {done}:""")

    def item(self, n):
        if n < 0: return f"wq{n+6}"
        return f"it{n}"
    def issue(self, n):
        R = self.R
        if n < 64:
            k = n & 31
            if k % 4 == 0 and n > 0:
                if k == 0: self.a(f"s_mov_b32 s{sT}, 0")
                else: self.a(f"s_add_u32 s{sT}, s{sT}, s{sStr}")
            reg = vKV + 4*k
            if n < 32:
                self.vm(self.item(n), f"buffer_load_dwordx4 {vr(reg)}, v{vK}, {srd(SK)}, s{sT} offen offset:{(k%4)*1024} {self.kfl}")
            else:
                self.vm(self.item(n), f"buffer_load_dwordx4 {vr(reg)}, v{vLin}, {srd(SV)}, s{sT} offen offset:{(k%4)*1024} {self.vfl}")
        else:
            k = n - 64
            va = vWo0 if k < 4 else vWo1
            self.vm(self.item(n), f"buffer_load_dwordx4 {vr(vKV+4*k)}, v{va}, {srd(SWO)}, 0 offen offset:{(k%4)*1152} {self.wofl}")

    def build_A(self, dst, rep):
        for i in range(4): self.a(f"v_and_b32 v{dst+i}, v{rep}, v{vM+i}")

    def q_mfma(self, t):
        A = vA0 if t % 2 == 0 else vA1
        rep = vT + (t % 2)
        sel = sSelLo if t % 2 == 0 else sSelHi
        self.a(f"v_perm_b32 v{rep}, v{vXd + t//2}, v{vXd + t//2}, s{sel}")
        self.build_A(A, rep)
        self.mfma(vD0, A, vWQB + 4*t, None if t == 0 else vD0)

    def qk_mfma(self, u):
        D = vD0 if u % 2 == 0 else vD1
        self.mfma(D, vKV + 8*u, vBA, None)
        self.mfma(D, vKV + 8*u + 4, vBB, D)
    def qk_fin(self, us):
        for u in us:
            D = vD0 if u % 2 == 0 else vD1
            self.dpp("v_add_f32", vS+u, D+1, D, "quad_perm:[1,1,1,1]")
            self.dpp("v_add_f32", D+2, D+3, D+2, "quad_perm:[0,1,3,3]")
        for u in us:
            D = vD0 if u % 2 == 0 else vD1
            self.dpp("v_add_f32", vS+u, D+2, vS+u, "quad_perm:[2,2,2,2]")
        for u in us:
            if u == 0: pass
            elif u == 1: self.a(f"v_max_f32 v{vMx}, v{vS}, v{vS+1}")
            else: self.a(f"v_max_f32 v{vMx}, v{vMx}, v{vS+u}")

    def softmax_max(self):
        t = vT
        self.dpp("v_mov_b32", vMc, vMx, None, "quad_perm:[0,0,0,0]")
        self.dpp("v_max_f32", vMc, vMc, vMc, "row_half_mirror")
        self.allred_rows("v_max_f32", vMc, t)
        self.a(f"v_mul_f32 v{vMc}, s{sC}, v{vMc}")
    def softmax_p(self, us):
        for j, u in enumerate(us):
            self.a(f"v_fma_f32 v{vS+u}, v{vS+u}, s{sC}, -v{vMc}")
        for j, u in enumerate(us):
            self.dpp("v_exp_f32", vT+j, vS+u, None, "quad_perm:[0,0,0,0]")
        for j, u in enumerate(us):
            self.a(f"v_cvt_pk_bf16_f32 v{vS+u}, v{vT+j}, v{vT+j}")
            if u == 0: self.a(f"v_mov_b32 v{vLs}, v{vT+j}")
            else: self.a(f"v_add_f32 v{vLs}, v{vLs}, v{vT+j}")
    def ml_publish(self):
        self.dpp("v_add_f32", vLs, vLs, vLs, "row_half_mirror")
        self.allred_rows("v_add_f32", vLs, vT)
        self.a(f"v_mov_b32 v{vTg}, s{sTag}\nv_lshlrev_b32 v{vT}, 7, v{vL}\ns_mov_b64 exec, 0x101")
        self.vm("mlpub", f"buffer_store_dwordx3 v[{vMc}:{vTg}], v{vT}, {srd(SWS)}, s{sMLs} offen sc1")
        self.a("s_mov_b64 exec, -1")
    def pv(self, j):
        A = vA0 if j % 2 == 0 else vA1
        P = vS + (j >> 1)
        if j % 2 == 0:
            self.a(f"v_and_b32 v{A}, v{P}, v{vM}\nv_and_b32 v{A+1}, v{P}, v{vM+1}")
            self.dpp("v_and_b32", A+2, P, vM+2, "row_shr:4", True)
            self.dpp("v_and_b32", A+3, P, vM+3, "row_shr:4", True)
        else:
            self.dpp("v_and_b32", A, P, vM, "row_shl:4", True)
            self.dpp("v_and_b32", A+1, P, vM+1, "row_shl:4", True)
            self.a(f"v_and_b32 v{A+2}, v{P}, v{vM+2}\nv_and_b32 v{A+3}, v{P}, v{vM+3}")
        return lambda: self.mfma(vO, A, vKV + 4*j, None if j == 0 else vO)

    def wave_allred(self, op, x, t):
        self.dpp(op, x, x, x, "quad_perm:[1,0,3,2]")
        self.dpp(op, x, x, x, "quad_perm:[2,3,0,1]")
        self.dpp(op, x, x, x, "row_half_mirror")
        self.dpp(op, x, x, x, "row_ror:8")
        self.allred_rows(op, x, t)

    def gen(self):
        a = self.a; R = self.R
        C = (128 ** -0.5) * math.log2(math.e)
        import struct
        Cbits = struct.unpack("<I", struct.pack("<f", C))[0]
        a(f"""
        s_cmp_ge_u32 s2, 256
        s_cbranch_scc1 L_end
        s_load_dwordx16 s[4:19], s[0:1], 0
        s_load_dwordx8 s[20:27], s[0:1], 64
        s_load_dwordx2 s[28:29], s[0:1], 96
        """)
        if self.stamps or self.amp: a("s_memrealtime s[96:97]")
        a(f"""
        v_lshrrev_b32 v{vT}, 6, v0
        v_and_b32 v{vL}, 63, v0
        v_readfirstlane_b32 s{sW}, v{vT}
        s_lshr_b32 s{sS}, s2, 5
        s_and_b32 s{sKvh}, s2, 15
        s_and_b32 s{sG}, s2, 31
        v_lshrrev_b32 v{vT+1}, 4, v{vL}            ; l>>4
        v_and_b32 v{vT+2}, 8, v{vL}
        v_lshrrev_b32 v{vT+2}, 1, v{vT+2}
        v_or_b32 v{vT+3}, v{vT+1}, v{vT+2}          ; grp
        v_mul_u32_u24 v{vT+4}, 48, v{vT}
        v_mad_u32_u24 v{vT+4}, v{vT+3}, 6, v{vT+4}  ; r0
        v_lshlrev_b32 v{vX}, 1, v{vT+4}
        v_and_b32 v{vT+5}, 7, v{vL}
        v_lshlrev_b32 v{vT+5}, 4, v{vT+5}           ; (l&7)*16
        v_lshl_or_b32 v{vWq}, v{vT+4}, 13, v{vT+5}
        s_lshr_b32 s{sT0}, s2, 7                   ; s>>2
        s_mul_i32 s{sT1}, s{sT0}, 0x240000
        s_mul_i32 s{sT0}, s{sT0}, 576
        s_lshl_b32 s{sT}, s{sKvh}, 9
        s_add_u32 s{sT1}, s{sT1}, s{sT}
        s_and_b32 s{sT}, s{sS}, 3
        s_lshl_b32 s{sT}, s{sT}, 7
        s_add_u32 s{sT1}, s{sT1}, s{sT}
        s_mov_b32 s{SX+2}, 576
        s_mov_b32 s{SX+3}, 0x20000
        s_mov_b32 s{SWQ+2}, {287*8192+128}
        s_mov_b32 s{SWQ+3}, 0x20000
        s_mov_b32 s{sStr}, 0x2000
        s_lshl_b32 s{sTag}, s{sKvh}, 21
        s_lshl_b32 s{sEoff}, s{sS}, 18
        s_add_u32 s{sTag}, s{sTag}, s{sEoff}
        s_lshl_b32 s{sEoff}, s{sW}, 12
        s_add_u32 s{sTag}, s{sTag}, s{sEoff}
        s_sub_u32 s{SK+2}, 0x40000, s{sEoff}
        s_mov_b32 s{SK+3}, 0x20000
        v_and_b32 v{vK}, 12, v{vL}
        v_or_b32 v{vK}, v{vK}, v{vT+1}
        v_lshlrev_b32 v{vK}, 2, v{vK}
        v_and_or_b32 v{vK}, v{vL}, 3, v{vK}
        v_lshlrev_b32 v{vK}, 4, v{vK}
        s_mov_b32 s{sT}, 0
        s_bitcmp1_b32 s2, 4
        s_waitcnt lgkmcnt(0)
        s_cselect_b64 s[6:7], s[16:17], s[6:7]
        s_cselect_b64 s[4:5], s[14:15], s[4:5]
        s_cselect_b64 s[10:11], s[20:21], s[10:11]
        s_cselect_b64 s[8:9], s[18:19], s[8:9]
        s_cselect_b64 s[12:13], s[22:23], s[12:13]
        s_cselect_b32 s{sEoff}, 0x100, 0
        s_add_u32 s{SK}, s6, s{sTag}
        s_addc_u32 s{SK+1}, s7, 0
        """)
        for n in range(self.kfront): self.issue(n)
        a(f"""
        s_add_u32 s{SX}, s4, s{sT0}
        s_addc_u32 s{SX+1}, s5, 0
        s_add_u32 s{SWQ}, s10, s{sT1}
        s_addc_u32 s{SWQ+1}, s11, 0
        """)
        self.vm("x", f"buffer_load_dwordx3 {vr(vXd,3)}, v{vX}, {srd(SX)}, 0 offen")
        for t in range(6):
            if t == 0: so = "0"
            elif t == 1: so = f"s{sStr}"
            else:
                a(f"s_add_u32 s{sT0}, s{sStr if t == 2 else sT0}, s{sStr}"); so = f"s{sT0}"
            self.vm(f"wq{t}", f"buffer_load_dwordx4 {vr(vWQB+4*t)}, v{vWq}, {srd(SWQ)}, {so} offen {self.wqfl}")
        if self.stamps: a(f"v_writelane_b32 v{vStamp}, s96, 31")
        a(f"""
        s_add_u32 s{SV}, s8, s{sTag}
        s_addc_u32 s{SV+1}, s9, 0
        s_mov_b32 s{SV+2}, s{SK+2}
        s_mov_b32 s{SV+3}, 0x20000
        s_load_dword s{sTag}, s[28:29], s{sEoff}
        s_mul_i32 s{sT0}, s{sKvh}, {256*1152}
        s_mul_i32 s{sT1}, s{sS}, {32*1152}
        s_add_u32 s{sT0}, s{sT0}, s{sT1}
        s_add_u32 s{SWO}, s12, s{sT0}
        s_addc_u32 s{SWO+1}, s13, 0
        s_mov_b32 s{SWO+2}, {32*1152}
        s_mov_b32 s{SWO+3}, 0x20000
        """)
        if self.tlbwarm:
            self.vm("tw0", f"buffer_load_dword v{vT+14}, off, {srd(SV)}, 0")
            self.vm("tw1", f"buffer_load_dword v{vT+15}, off, {srd(SWO)}, 0")
        a(f"""
        s_mov_b32 s{SWS}, s28
        s_mov_b32 s{SWS+1}, s29
        s_mov_b32 s{SWS+2}, 0x200000
        s_mov_b32 s{SWS+3}, 0x20000
        s_mov_b32 s{sStr}, 0x8000
        v_lshlrev_b32 v{vLin}, 4, v{vL}
        s_mov_b32 s{sA}, 0x0f0f0f0f
        s_mov_b32 s{sA+1}, 0x0f0f0f0f
        v_mov_b32 v{vT+12}, 0xffff
        v_mov_b32 v{vT+13}, 0
        v_lshlrev_b64 v[{vT+12}:{vT+13}], v{vLin}, v[{vT+12}:{vT+13}]
        s_mov_b32 s{sSelLo}, 0x01000100
        s_mov_b32 s{sSelHi}, 0x03020302
        v_cndmask_b32_e64 v{vM}, 0, v{vT+12}, s[{sA}:{sA+1}]
        v_cndmask_b32_e64 v{vM+1}, 0, v{vT+13}, s[{sA}:{sA+1}]
        v_cndmask_b32_e64 v{vM+2}, v{vT+12}, 0, s[{sA}:{sA+1}]
        v_cndmask_b32_e64 v{vM+3}, v{vT+13}, 0, s[{sA}:{sA+1}]
        s_lshl_b32 s{sQslot}, s{sG}, 3
        s_add_u32 s{sQslot}, s{sQslot}, s{sS}
        s_lshl_b32 s{sQslot}, s{sQslot}, 8
        s_add_u32 s{sQslot}, s{sQslot}, {QBOX}
        s_mov_b32 s{sPk0}, 0x07060501
        s_mov_b32 s{sPk1}, 0x07060502
        s_mov_b32 s{sPk2}, 0x07060503
        s_mov_b32 s{sCnt}, {RETRY}
        """)
        a(f"""v_mov_b32 v{vWo0}, v{vT+3}
        v_mov_b32 v{vWo1}, v{vT+5}
        v_mov_b32 v{vOW}, v{vT+1}""")
        self.stamp("pre")

        NB1, NQG = self.NB1, self.NQG
        NQ = NQG + R
        tasks = {n: [] for n in range(0, 80)}
        T = lambda n, f: tasks[n].append(f)
        kf = self.kfront
        for t in range(6): T(max(kf, kf + t + R - 6), lambda t=t: self.q_mfma(t))
        nqp = kf + R - 1
        NB1 = max(NB1, nqp); NQG = max(NQG, NB1+1); NQ = NQG + R
        def qpart():
            a(f"""
            v_permlane32_swap_b32 v{vD0}, v{vD0+2}
            v_permlane32_swap_b32 v{vD0+1}, v{vD0+3}
            v_lshlrev_b32 v{vT+2}, 1, v{vWo1}            ; (l&7)*32
            v_and_b32 v{vT+3}, 1, v{vOW}
            v_lshl_or_b32 v{vT+2}, v{vT+3}, 4, v{vT+2}
            v_lshrrev_b32 v{vT+3}, 1, v{vOW}
            v_lshl_or_b32 v{vT+2}, v{vT+3}, 3, v{vT+2}
            s_lshl_b32 s{sT0}, s{sW}, 8
            """)
            self.dpp("v_add_f32", vD0, vD0+2, vD0, "row_ror:8")
            self.dpp("v_add_f32", vD0+1, vD0+3, vD0+1, "row_ror:8")
            a(f"""v_add_u32 v{vT+2}, s{sT0}, v{vT+2}
            s_mov_b32 exec_lo, 0x00ff00ff
            s_mov_b32 exec_hi, 0x00ff00ff
            ds_write_b64 v{vT+2}, v[{vD0}:{vD0+1}] offset:{L_QP}
            s_mov_b64 exec, -1""")
        T(nqp, qpart)
        def bar1():
            a("s_waitcnt lgkmcnt(0)")
            a(f"s_mul_i32 s{sTag}, s{sTag}, 1664525")
            a(f"s_add_u32 s{sTag}, s{sTag}, 1013904223")
            a("s_barrier")
            self.stamp("bar1")
            l = self.only(0)
            a("s_mov_b64 exec, 0xffff")
            for w in range(6): a(f"ds_read_b128 {vr(vWQB+4*w)}, v{vLin} offset:{L_QP+256*w}")
            for k, (x, y) in enumerate([(0,1),(2,3),(4,5),(0,2),(0,4)]):
                if k < 3: a(f"s_waitcnt lgkmcnt({4-2*k})")
                for h in (0, 2):
                    a(f"v_pk_add_f32 v[{vWQB+4*x+h}:{vWQB+4*x+h+1}], v[{vWQB+4*x+h}:{vWQB+4*x+h+1}], v[{vWQB+4*y+h}:{vWQB+4*y+h+1}]")
            self.pack(vWQB)
            a(f"{l}:")
            self.vm_masked(0, "0xffff", [("qpub", f"buffer_store_dwordx4 {vr(vWQB)}, v{vLin}, {srd(SWS)}, s{sQslot} offen sc1")])
        T(NB1, bar1)
        def setup1():
            a(f"""
            s_mov_b32 s{sUp0}, 0x0c04000c
            s_mov_b32 s{sUp1}, 0x04020100
            s_mov_b32 s{SOUT}, s24
            s_mov_b32 s{SOUT+1}, s25
            s_mov_b32 s{SOUT+2}, 2304
            s_mov_b32 s{SOUT+3}, 0x20000
            s_mov_b32 s{sC}, {Cbits:#x}
            s_lshl_b32 s{sQg}, s{sG}, 11
            s_add_u32 s{sMLg}, s{sQg}, {MLBOX}
            s_add_u32 s{sQg}, s{sQg}, {QBOX}
            s_lshl_b32 s{sT0}, s{sS}, 3
            s_add_u32 s{sT0}, s{sT0}, s{sW}
            s_lshl_b32 s{sT0}, s{sT0}, 4
            s_add_u32 s{sMLs}, s{sMLg}, s{sT0}
            s_lshl_b32 s{sT0}, s{sG}, 13
            s_add_u32 s{sT0}, s{sT0}, {OBOX}
            s_lshl_b32 s{sT1}, s{sS}, 10
            s_add_u32 s{sOg}, s{sT0}, s{sT1}
            s_lshl_b32 s{sT1}, s{sW}, 10
            s_add_u32 s{sOs}, s{sT0}, s{sT1}
            s_lshl_b32 s{sT1}, s{sS}, 7
            s_add_u32 s{sOs}, s{sOs}, s{sT1}
            s_lshl_b32 s{sCi}, s{sS}, 4
            s_add_u32 s{sCi}, s{sCi}, s{sKvh}
            s_lshr_b32 s{sT0}, s{sG}, 4
            s_mul_i32 s{sT0}, s{sT0}, 72
            s_add_u32 s{sT1}, s{sT0}, s{sCi}
            s_lshl_b32 s{sOutO}, s{sT1}, 4
            s_lshl_b32 s{sPg}, s{sT1}, 12
            s_add_u32 s{sPg}, s{sPg}, {PBOX}
            s_lshl_b32 s{sT0}, s{sT0}, 12
            s_lshl_b32 s{sT1}, s{sW}, 15
            s_add_u32 s{sT0}, s{sT0}, s{sT1}
            s_lshl_b32 s{sT1}, s{sKvh}, 3
            s_add_u32 s{sT1}, s{sT1}, s{sS}
            s_lshl_b32 s{sT1}, s{sT1}, 5
            s_add_u32 s{sT0}, s{sT0}, s{sT1}
            s_add_u32 s{sPs}, s{sT0}, {PBOX}
            s_mov_b32 s{sExO}, 0x01010101
            s_mov_b32 s{sExO+1}, 0x01010101
            s_mov_b32 s{sExP}, 0x00ff00ff
            s_mov_b32 s{sT1}, 0x100000
            s_cmp_eq_u32 s{sW}, 7
            s_cselect_b32 s{sExP+1}, s{sExP}, 0
            s_cselect_b32 s{sT1}, 0x80, s{sT1}
            s_mov_b32 s{sExOut}, 0x00030003
            s_mov_b32 s{sExOut+1}, 0x00030003
            s_lshl_b32 s{sT0}, s{sS}, 3
            s_lshl_b64 s[{sExF}:{sExF+1}], 0xff, s{sT0}
            """)
            a(f"""
            v_lshl_or_b32 v{vOG}, v{vWo1}, 3, 0              ; (l&7)*128
            v_lshl_or_b32 v{vOG}, v{vWo0}, 4, v{vOG}          ; + slot*16
            v_lshlrev_b32 v{vPP}, 8, v{vWo1}                 ; (l&7)*4096
            v_and_b32 v{vT}, 1, v{vOW}                       ; (l>>4)&1
            v_lshl_or_b32 v{vPP}, v{vT}, 4, v{vPP}
            v_lshrrev_b32 v{vT+1}, 1, v{vOW}                 ; l>>5
            v_lshl_or_b32 v{vPP}, v{vT+1}, 15, v{vPP}
            v_and_b32 v{vOut}, 1, v{vL}
            v_lshl_add_u32 v{vOut}, v{vOut}, 2, v{vOW}
            v_lshlrev_b32 v{vOut}, 1, v{vOut}
            v_lshrrev_b32 v{vFW}, 2, v{vWo1}                 ; (l&7)*4
            s_lshr_b32 s{sT0}, s{sW}, 2
            s_lshl_b32 s{sT0}, s{sT0}, 5
            v_add_u32 v{vFR}, s{sT0}, v{vFW}
            v_and_b32 v{vOP}, 0x38, v{vL}
            v_lshlrev_b32 v{vOP}, 1, v{vOP}                  ; (l>>3)*16
            v_mul_u32_u24 v{vOR}, {L_OSTR//16}, v{vWo1}       ; (l&7)*1040
            v_add_u32 v{vOR}, v{vOR}, v{vOP}
            s_lshl_b32 s{sT0}, s{sW}, 7
            v_add_u32 v{vOR}, s{sT0}, v{vOR}
            v_and_b32 v{vT+2}, 15, v{vL}
            v_lshlrev_b32 v{vOW}, 5, v{vT+2}
            v_lshl_or_b32 v{vOW}, v{vT}, 4, v{vOW}
            v_lshl_or_b32 v{vOW}, v{vT+1}, 9, v{vOW}
            s_mul_i32 s{sT0}, s{sW}, {L_OSTR}
            v_add_u32 v{vOW}, s{sT0}, v{vOW}
            v_mul_u32_u24 v{vWo0}, {4*1152}, v{vWo0}
            v_add_u32 v{vWo0}, v{vWo0}, v{vWo1}
            s_lshl_b32 s{sT0}, s{sW}, 7
            v_add_u32 v{vWo0}, s{sT0}, v{vWo0}
            v_add_u32 v{vWo1}, s{sT1}, v{vWo0}
            v_and_b32 v{vX}, 0xff, v{vK}
            v_lshrrev_b32 v{vT}, 1, v{vK}
            v_and_b32 v{vT}, 0x100, v{vT}
            v_or_b32 v{vX}, v{vX}, v{vT}
            """)
        T(NB1+1, setup1)
        assert NQG >= NB1+1
        qg = [f"buffer_load_dwordx4 {vr(vWQB+4*k)}, v{vLin}, {srd(SWS)}, s{sQg} offen offset:{1024*k} sc1" for k in range(2)]
        def t_qg():
            self.vm_masked(1, "-1", [("qg0", qg[0]), ("qg1", qg[1])])
        T(NQG, t_qg)
        def t_q():
            self.wait("qg1")
            l = self.only(1)
            self.stamp("qchk")
            self.check_retry([vWQB+3, vWQB+7], lambda: a("\n".join(qg)))
            self.stamp("qok")
            self.unpack([vWQB, vWQB+4])
            a(f"""v_pk_add_f32 v[{vWQB}:{vWQB+1}], v[{vWQB}:{vWQB+1}], v[{vWQB+4}:{vWQB+5}]
            v_pk_add_f32 v[{vWQB+2}:{vWQB+3}], v[{vWQB+2}:{vWQB+3}], v[{vWQB+6}:{vWQB+7}]
            v_lshlrev_b32 v{vT+2}, 3, v{vL}
            v_cvt_pk_bf16_f32 v{vT}, v{vWQB}, v{vWQB+1}
            v_cvt_pk_bf16_f32 v{vT+1}, v{vWQB+2}, v{vWQB+3}
            ds_write_b64 v{vT+2}, v[{vT}:{vT+1}] offset:{L_QB}
            s_waitcnt lgkmcnt(0)
            {l}:
            s_barrier""")
            self.stamp("bar2")
            a(f"""ds_read_b128 {vr(vBB)}, v{vX} offset:{L_QB}
            s_waitcnt lgkmcnt(0)""")
            for i in range(4): a(f"v_cndmask_b32_e64 v{vBA+i}, 0, v{vBB+i}, s[{sA}:{sA+1}]")
            for i in range(4): a(f"v_cndmask_b32_e64 v{vBB+i}, v{vBB+i}, 0, s[{sA}:{sA+1}]")
        T(NQ, t_q)
        u = 0; n = NQ
        while u < 16:
            avail = (n - R + 1) // 2
            us = list(range(u, min(16, avail, u + (self.qk_per_step if n > NQ else 1))))
            if us:
                def f(us=us):
                    for x in us: self.qk_mfma(x)
                    self.qk_fin(us)
                T(n, f); u = us[-1] + 1
            n += 1
        nsm = n - 1
        assert nsm == 31 + R, nsm
        T(nsm, self.softmax_max)
        T(nsm, lambda: self.stamp("smax"))
        T(nsm, lambda: self.softmax_p([0,1,2,3]))
        T(nsm+1, lambda: self.softmax_p([4,5,6,7,8,9]))
        T(nsm+2, lambda: self.softmax_p([10,11,12,13,14,15]))
        T(nsm+2, self.ml_publish)
        j = 0; n = nsm + 3
        pvlast = None
        while j < 32:
            avail = n - R - 32 + 1
            js = list(range(j, min(32, avail, j + self.pv_per_step)))
            if js:
                def f(js=js):
                    pend = None
                    for x in js:
                        m = self.pv(x)
                        if pend: pend()
                        pend = m
                    pend()
                T(n, f); j = js[-1] + 1
            n += 1
        nlast = n - 1
        assert nlast == 63 + R
        NML = self.NML
        mg = [f"buffer_load_dwordx3 {vr(vWQB+4*k,3)}, v{vLin}, {srd(SWS)}, s{sMLg} offen offset:{1024*k} sc1" for k in range(2)]
        def mlg():
            self.vm_masked(2, "-1", [("mlg0", mg[0]), ("mlg", mg[1])])
        def t_ml():
            mlg()
        T(NML, t_ml)
        def t_mlchk():
            self.wait("mlg")
            l = self.only(2)
            self.stamp("mlchk")
            self.check_retry([vWQB+2, vWQB+6], lambda: a("\n".join(mg)))
            m0, l0, m1, l1 = vWQB, vWQB+1, vWQB+4, vWQB+5
            x0, x1 = vWQB+8, vWQB+9
            a(f"v_mov_b32 v{x0}, v{m0}\nv_mov_b32 v{x1}, v{m1}")
            self.wave_allred2("v_max_f32", x0, x1)
            a(f"""v_sub_f32 v{m0}, v{m0}, v{x0}
            v_sub_f32 v{m1}, v{m1}, v{x1}
            v_exp_f32 v{m0}, v{m0}
            v_exp_f32 v{m1}, v{m1}
            s_nop 0
            v_mul_f32 v{x0}, v{m0}, v{l0}
            v_mul_f32 v{x1}, v{m1}, v{l1}""")
            self.wave_allred2("v_add_f32", x0, x1)
            a(f"""v_rcp_f32 v{x0}, v{x0}
            v_rcp_f32 v{x1}, v{x1}
            s_nop 0
            v_mul_f32 v{m0}, v{m0}, v{x0}
            v_mul_f32 v{m1}, v{m1}, v{x1}
            s_mov_b64 exec, s[{sExF}:{sExF+1}]
            ds_write_b32 v{vFW}, v{m0} offset:{L_F}
            ds_write_b32 v{vFW}, v{m1} offset:{L_F+32}
            s_mov_b64 exec, -1
            {l}:""")
        T(NML+R, t_mlchk)
        assert NML + R < nlast and NML > nsm + 3

        nthr = 64 + self.wo_early
        seq = [self.item(k) for k in range(kf)] + [f"wq{t}" for t in range(6)] + [self.item(k) for k in range(kf, 72)]
        for n in range(kf, nlast+1):
            if n - R < 64: self.wait(seq[n + 6 - R])
            if n < nthr: self.issue(n)
            if n == nlast: self.stamp("vlast")
            for f in tasks[n]: f()
        for n in range(nthr, 72): self.issue(n)
        a(f"""ds_write_b128 v{vOW}, {vr(vO)} offset:{L_OP}
        s_waitcnt lgkmcnt(0)
        s_barrier""")
        self.stamp("bar3")
        a(f"""ds_read_b128 {vr(vT)}, v{vOR} offset:{L_OP}
        ds_read_b32 v{vT+4}, v{vFR} offset:{L_F}
        s_waitcnt lgkmcnt(0)""")
        for r in range(4): a(f"v_mul_f32 v{vT+r}, v{vT+r}, v{vT+4}")
        for ctl in ("quad_perm:[1,0,3,2]", "quad_perm:[2,3,0,1]", "row_half_mirror"):
            for r in range(4): self.dpp("v_add_f32", vT+r, vT+r, vT+r, ctl)
        self.pack(vT)
        a(f"s_mov_b64 exec, s[{sExO}:{sExO+1}]")
        self.vm("opub", f"buffer_store_dwordx4 {vr(vT)}, v{vOP}, {srd(SWS)}, s{sOs} offen sc1")
        a("s_mov_b64 exec, -1")
        g0 = vT + 8
        og = f"buffer_load_dwordx4 {vr(g0)}, v{vOG}, {srd(SWS)}, s{sOg} offen sc1"
        self.vm("og", og)
        self.stamp("opub")
        a("s_waitcnt vmcnt(0)")
        self.stamp("og1")
        self.check_retry([g0+3], lambda: a(og))
        self.stamp("ogok")
        self.unpack([g0])
        for ctl in ("quad_perm:[1,0,3,2]", "quad_perm:[2,3,0,1]", "row_half_mirror"):
            for r in range(4): self.dpp("v_add_f32", g0+r, g0+r, g0+r, ctl)
        for r in range(4): a(f"v_cvt_pk_bf16_f32 v{g0+r}, v{g0+r}, v{g0+r}")
        pend = None
        for i in range(4):
            A = vA0 if i % 2 == 0 else vA1
            self.build_A(A, g0+i)
            if pend: pend()
            def m(i=i, A=A):
                self.mfma(vD0, A, vKV + 4*i, None if i == 0 else vD0)
                self.mfma(vD1, A, vKV + 16 + 4*i, None if i == 0 else vD1)
            pend = m
        pend()
        for r in range(4): a(f"v_permlane32_swap_b32 v{vD0+r}, v{vD1+r}")
        for r in range(4): self.dpp("v_add_f32", vD0+r, vD1+r, vD0+r, "row_ror:8")
        self.pack(vD0)
        a(f"s_mov_b64 exec, s[{sExP}:{sExP+1}]")
        self.vm("ppub", f"buffer_store_dwordx4 {vr(vD0)}, v{vPP}, {srd(SWS)}, s{sPs} offen sc1")
        a("s_mov_b64 exec, -1")
        self.stamp("ppub")
        a(f"""s_cmp_lg_u32 s{sW}, {self.consw}
        s_cbranch_scc1 L_fin
        s_cmp_ge_u32 s{sCi}, 72
        s_cbranch_scc1 L_fin""")
        p0 = vKV + 32
        def pg():
            for t in range(4): a(f"buffer_load_dwordx4 {vr(p0+4*t)}, v{vLin}, {srd(SWS)}, s{sPg} offen offset:{t*1024} sc1")
        pg()
        a("s_waitcnt vmcnt(0)")
        self.stamp("pg1")
        self.check_retry([p0+3, p0+7, p0+11, p0+15], pg)
        self.stamp("pgok")
        self.unpack([p0, p0+4, p0+8, p0+12])
        for (x, y) in [(0,1),(2,3),(0,2)]:
            for h in (0, 2):
                a(f"v_pk_add_f32 v[{p0+4*x+h}:{p0+4*x+h+1}], v[{p0+4*x+h}:{p0+4*x+h+1}], v[{p0+4*y+h}:{p0+4*y+h+1}]")
        a(f"""v_permlane32_swap_b32 v{p0}, v{p0+2}
        v_permlane32_swap_b32 v{p0+1}, v{p0+3}
        v_add_f32 v{p0}, v{p0}, v{p0+2}
        v_add_f32 v{p0+1}, v{p0+1}, v{p0+3}
        v_permlane16_swap_b32 v{p0}, v{p0+1}
        v_add_f32 v{p0}, v{p0}, v{p0+1}""")
        for ctl in ("row_ror:8", "row_ror:4", "quad_perm:[2,3,0,1]"):
            self.dpp("v_add_f32", p0, p0, p0, ctl)
        a(f"""v_cvt_pk_bf16_f32 v{p0}, v{p0}, v{p0}
        s_mov_b64 exec, s[{sExOut}:{sExOut+1}]
        buffer_store_short v{p0}, v{vOut}, {srd(SOUT)}, s{sOutO} offen
        s_cmp_lg_u32 s{sCi}, 0
        s_cbranch_scc1 L_fin2
        v_mov_b32 v{vT}, s{sTag}
        s_mov_b64 exec, 1
        buffer_store_dword v{vT}, off, {srd(SWS)}, s{sEoff} sc1
        L_fin2:
        s_mov_b64 exec, -1""")
        a("L_fin:")
        if self.amp:
            self.stamp("end")
            a(f"""s_cmp_lg_u32 s2, {self.amp[2] if len(self.amp) > 2 else 0}
            s_cbranch_scc1 L_end
            s_cmp_lg_u32 s{sW}, {self.amp[3] if len(self.amp) > 3 else 0}
            s_cbranch_scc1 L_end
            s_memrealtime s[4:5]
            s_waitcnt lgkmcnt(0)
            s_sub_u32 s6, s22, s96
            s_min_u32 s6, s6, 8000
            s_mul_i32 s6, s6, {int(self.amp[1]*16)}
            s_lshr_b32 s6, s6, 4
            s_mov_b32 s7, 2000000
            L_spin:
            s_memrealtime s[8:9]
            s_waitcnt lgkmcnt(0)
            s_sub_u32 s8, s8, s4
            s_cmp_ge_u32 s8, s6
            s_cbranch_scc1 L_end
            s_sub_u32 s7, s7, 1
            s_cbranch_scc0 L_spin
            s_branch L_end""")
        if self.stamps:
            self.stamp("end")
            a(f"""s_lshl_b32 s{sT0}, s2, 3
            s_add_u32 s{sT0}, s{sT0}, s{sW}
            s_lshl_b32 s{sT0}, s{sT0}, 7
            s_add_u32 s{sT0}, s{sT0}, {STAMP}
            v_lshlrev_b32 v{vT}, 2, v{vL}
            s_mov_b32 exec_hi, 0
            buffer_store_dword v{vStamp}, v{vT}, {srd(SWS)}, s{sT0} offen
            s_waitcnt vmcnt(0)""")
        a("L_end:\ns_endpgm")
        lines, nn = pad(self.L)
        self.nops = nn
        return "\n".join(lines) + "\n"

    def wave_allred2(self, op, x, y):
        for ctl in ("quad_perm:[1,0,3,2]", "quad_perm:[2,3,0,1]", "row_half_mirror", "row_ror:8"):
            self.dpp(op, x, x, x, ctl); self.dpp(op, y, y, y, ctl)
        t, u = vT, vT+1
        for sw in ("v_permlane16_swap_b32", "v_permlane32_swap_b32"):
            self.a(f"""v_mov_b32 v{t}, v{x}
            v_mov_b32 v{u}, v{y}
            {sw} v{x}, v{t}
            {sw} v{y}, v{u}
            {op} v{x}, v{x}, v{t}
            {op} v{y}, v{y}, v{u}""")

def header():
    ref = open("concat_heads__gqa_block_cached__gqa_block_cached__decode.s.ref").read().split("\n")
    out = []
    for l in ref:
        if l.startswith("; @launch"): break
        out.append(l)
    return "\n".join(out) + "\n"

def gen(**kw):
    g = G(**kw)
    body = g.gen()
    txt = wrap(body, 256, 512, LDS_BYTES, vgpr=NVGPR, header=header())
    return txt, g

if __name__ == "__main__":
    kw = eval(sys.argv[2]) if len(sys.argv) > 2 else {}
    txt, g = gen(**kw)
    open(sys.argv[1], "w").write(txt)
    print("nops", g.nops, "lines", txt.count("\n"), g.stamp_names)
```

```python
import math, sys
from asmlib import wrap
from hz import pad

QBOX, MLBOX, OBOX, PBOX, STAMP = 0x200000, 0x20000, 0x30000, 0x70000, 0x100000
XBOX = 0x240000
L_QP, L_QB, L_F, L_FL, L_OP, L_OSTR = 0, 8192, 8704, 7168, 9216, 1040
LDS_BYTES = L_OP + 8*L_OSTR
RETRY = 1 << 16

sW, sS, sKvh, sG, sT, sStr, sCnt = 30, 31, 33, 34, 35, 68, 69
SK, SV, SWQ, SX, SWO, SWS, SDBG, SOUT = 36, 40, 44, 48, 52, 56, 60, 64
sA = 70
sSelLo, sSelHi, sC = 72, 73, 74
sQslot, sQg, sMLs, sMLg, sOs, sOg, sPs, sPg, sOutO = 75, 76, 77, 78, 79, 80, 81, 82, 83
sExO, sExP, sExOut, sExF, sTmp2 = 84, 86, 88, 90, 92
sT0, sT1 = 3, 32
sTag, sEoff, sCi = 60, 61, 101
sPk0, sPk1, sPk2, sUp0, sUp1 = 62, 63, 98, 99, 100
sQg2, sLoc, sXcc, sXg = 23, 22, 21, 20
sCm = 26
sStamp0 = 94

vTid, vL, vK, vLin, vWq, vX = 0, 1, 2, 3, 4, 5
vM = 6
vXd = 10
vOW, vOR, vFR, vOP, vOG, vWo0, vWo1, vPP, vOut, vFW = 14, 15, 16, 17, 18, 19, 20, 21, 22, 23
vBA, vBB = 24, 28
vA0, vA1 = 32, 36
vO = 40
vD0, vD1 = 44, 48
vS = 52
vMc, vLs, vTg, vMx = 68, 69, 70, 71
vT = 72
vWQB = 88
vKV = 112
vStamp = 240
NVGPR = 244

def srd(n): return f"s[{n}:{n+3}]"
def vr(n, k=4): return f"v[{n}:{n+k-1}]"

class G:
    def __init__(self, R=3, NB1=2, NQG=8, NML=52, kfl="nt", vfl="nt", wqfl="nt", wofl="nt", stamps=False,
                 qk_per_step=2, pv_per_step=3, wo_early=3, consw=0, kfront=1, tlbwarm=False, amp=None, ost='sc1', old='sc1', qst='sc1', mst='sc1', xmap=0, qrot=0, wqw=128, roles=False, boost1=0, boost2=0, boost3=0, wosched=None, diag=0, ramp=None, ogwait=False, loc=None):
        self.__dict__.update(locals()); del self.__dict__['self']
        self.L = []
        self.ops = []; self.done = -1
        self.nlab = 0; self.nstamp = 0; self.stamp_names = []

    def a(self, s):
        for l in s.split("\n"):
            l = l.split(';')[0].strip()
            if l: self.L.append(l if l.endswith(":") else "    " + l)
    def lab(self, p="L"):
        self.nlab += 1; return f"{p}_{self.nlab}"
    def vm(self, name, text, cond=None):
        self.a(text); self.ops.append((name, cond))
    def wait(self, name, cond=None, extra=""):
        idx = max(i for i, o in enumerate(self.ops) if o[0] == name)
        if idx <= self.done:
            if extra: self.a(f"s_waitcnt {extra}")
            return
        n = sum(1 for o in self.ops[idx+1:] if o[1] is None or o[1] == cond)
        assert n <= 63
        if cond is None:
            x = [o for o in self.ops[idx+1:] if o[1] is not None]
            assert len(set(o[1] for o in x)) <= 1
            if x:
                l = self.lab("RW")
                self.a(f"s_waitcnt vmcnt({n+len(x)})\ns_cbranch_vccnz {l}\ns_waitcnt vmcnt({n}) {extra}\n{l}:")
                self.done = idx
                return
        self.a(f"s_waitcnt vmcnt({n}) {extra}")
        if cond is None: self.done = idx
        else: self.ops = [o if (i > idx or o[1] != cond) else (o[0], 'gone') for i, o in enumerate(self.ops)]; self.purge()
    def purge(self):
        keep = [i for i, o in enumerate(self.ops) if o[1] != 'gone']
        self.done = sum(1 for i in keep if i <= self.done) - 1
        self.ops = [self.ops[i] for i in keep]
    def role(self, w):
        l = self.lab("ROLE")
        self.a(f"s_cmp_eq_u32 s{sW}, {w}\ns_cselect_b64 vcc, -1, 0\ns_cbranch_scc0 {l}")
        return l
    def stamp(self, name):
        if self.amp and self.amp[0] == name: self.a("s_memrealtime s[16:17]")
        if not self.stamps: return
        if self.stamps is not True and name not in self.stamps and name != "end": return
        k = self.nstamp; self.nstamp += 1; self.stamp_names.append(name)
        assert k < 28
        self.a(f"""s_memrealtime s[94:95]
        s_waitcnt lgkmcnt(0)
        v_writelane_b32 v{vStamp}, s94, {k}""")
    def vm_masked(self, w, mask, ops):
        self.a(f"s_cmp_eq_u32 s{sW}, {w}\ns_cselect_b64 exec, {mask}, 0")
        for name, text in ops: self.vm(name, text)
        self.a("s_mov_b64 exec, -1")
    def store_fl(self, name, text, cond=None, fl='sc1'):
        if self.loc is None:
            self.vm(name, text + " " + fl, cond); return
        l1, l2 = self.lab("FAR"), self.lab("STD")
        self.a(f"s_cmp_eq_u32 s{sLoc}, 0\ns_cbranch_scc1 {l1}\n{text}\ns_branch {l2}\n{l1}:")
        self.vm(name, text + " sc1", cond)
        self.a(f"{l2}:")
    def only(self, w):
        l = self.lab("SKIP")
        self.a(f"s_cmp_lg_u32 s{sW}, {w}\ns_cbranch_scc1 {l}")
        return l

    def mfma(self, d, a, b, c):
        cc = "0" if c is None else vr(c)
        self.a(f"v_mfma_f32_16x16x32_bf16 {vr(d)}, {vr(a)}, {vr(b)}, {cc}")
    def dpp(self, op, d, s0, s1, ctl, bc=False):
        t = f"{op}_dpp v{d}, v{s0}" + (f", v{s1}" if s1 is not None else "") + f" {ctl} row_mask:0xf bank_mask:0xf" + (" bound_ctrl:0" if bc else "")
        self.a(t)
    def allred_rows(self, op, x, t):
        self.a(f"""v_mov_b32 v{t}, v{x}
        v_permlane16_swap_b32 v{x}, v{t}
        {op} v{x}, v{x}, v{t}
        v_mov_b32 v{t}, v{x}
        v_permlane32_swap_b32 v{x}, v{t}
        {op} v{x}, v{x}, v{t}""")

    def pack(self, r):
        self.a(f"""v_perm_b32 v{r}, v{r}, v{r+3}, s{sPk0}
        v_perm_b32 v{r+1}, v{r+1}, v{r+3}, s{sPk1}
        v_perm_b32 v{r+2}, v{r+2}, v{r+3}, s{sPk2}
        v_mov_b32 v{r+3}, s{sTag}""")
    def unpack(self, rs):
        for r in rs: self.a(f"v_perm_b32 v{r+3}, v{r+1}, v{r}, s{sUp0}")
        for r in rs: self.a(f"v_perm_b32 v{r+3}, v{r+2}, v{r+3}, s{sUp1}")
    def check_retry(self, tags, reload_fn, die=None):
        top, done = self.lab("CHK"), self.lab("OK")
        self.a(f"{top}:")
        if die is not None:
            for k, t in enumerate(tags): self.a(f"v_xor_b32 v{die+k}, s{sTag}, v{t}")
            self.a(f"v_or_b32 v{die+2}, v{die}, v{die+1}\nv_cmp_lt_u32 vcc, 15, v{die+2}")
            assert len(tags) == 2
            tags = tags[:1]
        else: self.a(f"v_cmp_ne_u32 vcc, s{sTag}, v{tags[0]}")
        if len(tags) == 1:
            self.a(f"s_cbranch_vccz {done}")
        elif len(tags) == 8:
            for k, t in enumerate(tags[1:]):
                p = sCm + 2*(k % 2)
                self.a(f"v_cmp_ne_u32_e64 s[{p}:{p+1}], s{sTag}, v{t}")
                if k: q = sCm + 2*((k-1) % 2); self.a(f"s_or_b64 vcc, vcc, s[{q}:{q+1}]")
            self.a(f"s_or_b64 vcc, vcc, s[{sCm}:{sCm+1}]")
            self.a(f"s_cbranch_scc0 {done}")
        else:
            prs = [sCm, sCm+2, sTmp2]
            for k, t in enumerate(tags[1:]): self.a(f"v_cmp_ne_u32_e64 s[{prs[k]}:{prs[k]+1}], s{sTag}, v{t}")
            if len(tags) == 4:
                self.a(f"s_or_b64 s[{prs[1]}:{prs[1]+1}], s[{prs[1]}:{prs[1]+1}], s[{prs[2]}:{prs[2]+1}]")
                self.a(f"s_or_b64 s[{prs[0]}:{prs[0]+1}], s[{prs[0]}:{prs[0]+1}], s[{prs[1]}:{prs[1]+1}]")
            self.a(f"s_or_b64 vcc, vcc, s[{prs[0]}:{prs[0]+1}]")
            self.a(f"s_cbranch_scc0 {done}")
        self.a(f"""s_cmp_eq_u32 s{sCnt}, 0
        s_cbranch_scc1 {done}
        s_sub_u32 s{sCnt}, s{sCnt}, 1
        s_mov_b64 exec, vcc""")
        reload_fn()
        self.a(f"""s_mov_b64 exec, -1
        s_waitcnt vmcnt(0)
        s_branch {top}
        {done}:""")

    def item(self, n):
        if n < 0: return f"wq{n+6}"
        return f"it{n}"
    def issue(self, n):
        R = self.R
        if n < 64:
            k = n & 31
            if k % 4 == 0 and n > 0:
                if k == 0: self.a(f"s_mov_b32 s{sT}, 0")
                else: self.a(f"s_add_u32 s{sT}, s{sT}, s{sStr}")
            reg = vKV + 4*k
            if n < 32:
                self.vm(self.item(n), f"buffer_load_dwordx4 {vr(reg)}, v{vK}, {srd(SK)}, s{sT} offen offset:{(k%4)*1024} {self.kfl}")
            else:
                self.vm(self.item(n), f"buffer_load_dwordx4 {vr(reg)}, v{vLin}, {srd(SV)}, s{sT} offen offset:{(k%4)*1024} {self.vfl}")
        else:
            k = n - 64
            va = vWo0 if k < 4 else vWo1
            self.vm(self.item(n), f"buffer_load_dwordx4 {vr(vKV+4*k)}, v{va}, {srd(SWO)}, 0 offen offset:{(k%4)*1152} {self.wofl}")

    def build_A(self, dst, rep):
        for i in range(4): self.a(f"v_and_b32 v{dst+i}, v{rep}, v{vM+i}")

    def q_mfma(self, t):
        A = vA0 if t % 2 == 0 else vA1
        rep = vT + (t % 2)
        sel = sSelLo if t % 2 == 0 else sSelHi
        self.a(f"v_perm_b32 v{rep}, v{vXd + t//2}, v{vXd + t//2}, s{sel}")
        self.build_A(A, rep)
        self.mfma(vD0, A, vWQB + 4*t, None if t == 0 else vD0)

    def qk_mfma(self, u):
        D = vD0 if u % 2 == 0 else vD1
        self.mfma(D, vKV + 8*u, vBA, None)
        self.mfma(D, vKV + 8*u + 4, vBB, D)
    def qk_fin(self, us):
        for u in us:
            D = vD0 if u % 2 == 0 else vD1
            self.dpp("v_add_f32", vS+u, D+1, D, "quad_perm:[1,1,1,1]")
            self.dpp("v_add_f32", D+2, D+3, D+2, "quad_perm:[0,1,3,3]")
        for u in us:
            D = vD0 if u % 2 == 0 else vD1
            self.dpp("v_add_f32", vS+u, D+2, vS+u, "quad_perm:[2,2,2,2]")
        for u in us:
            if u == 0: pass
            elif u == 1: self.a(f"v_max_f32 v{vMx}, v{vS}, v{vS+1}")
            else: self.a(f"v_max_f32 v{vMx}, v{vMx}, v{vS+u}")

    def softmax_max(self):
        t = vT
        self.dpp("v_mov_b32", vMc, vMx, None, "quad_perm:[0,0,0,0]")
        self.dpp("v_max_f32", vMc, vMc, vMc, "row_half_mirror")
        self.allred_rows("v_max_f32", vMc, t)
        self.a(f"v_mul_f32 v{vMc}, s{sC}, v{vMc}")
    def softmax_p(self, us):
        for j, u in enumerate(us):
            self.a(f"v_fma_f32 v{vS+u}, v{vS+u}, s{sC}, -v{vMc}")
        for j, u in enumerate(us):
            self.dpp("v_exp_f32", vT+j, vS+u, None, "quad_perm:[0,0,0,0]")
        for j, u in enumerate(us):
            self.a(f"v_cvt_pk_bf16_f32 v{vS+u}, v{vT+j}, v{vT+j}")
            if u == 0: self.a(f"v_mov_b32 v{vLs}, v{vT+j}")
            else: self.a(f"v_add_f32 v{vLs}, v{vLs}, v{vT+j}")
    def ml_publish(self):
        self.dpp("v_add_f32", vLs, vLs, vLs, "row_half_mirror")
        self.allred_rows("v_add_f32", vLs, vT)
        self.a(f"v_mov_b32 v{vTg}, s{sTag}\nv_lshlrev_b32 v{vT}, 7, v{vL}\ns_mov_b64 exec, 0x101")
        self.store_fl("mlpub", f"buffer_store_dwordx3 v[{vMc}:{vTg}], v{vT}, {srd(SWS)}, s{sMLs} offen", None, self.mst)
        self.a("s_mov_b64 exec, -1")
    def pv(self, j):
        A = vA0 if j % 2 == 0 else vA1
        P = vS + (j >> 1)
        if j % 2 == 0:
            self.a(f"v_and_b32 v{A}, v{P}, v{vM}\nv_and_b32 v{A+1}, v{P}, v{vM+1}")
            self.dpp("v_and_b32", A+2, P, vM+2, "row_shr:4", True)
            self.dpp("v_and_b32", A+3, P, vM+3, "row_shr:4", True)
        else:
            self.dpp("v_and_b32", A, P, vM, "row_shl:4", True)
            self.dpp("v_and_b32", A+1, P, vM+1, "row_shl:4", True)
            self.a(f"v_and_b32 v{A+2}, v{P}, v{vM+2}\nv_and_b32 v{A+3}, v{P}, v{vM+3}")
        return lambda: self.mfma(vO, A, vKV + 4*j, None if j == 0 else vO)

    def wave_allred(self, op, x, t):
        self.dpp(op, x, x, x, "quad_perm:[1,0,3,2]")
        self.dpp(op, x, x, x, "quad_perm:[2,3,0,1]")
        self.dpp(op, x, x, x, "row_half_mirror")
        self.dpp(op, x, x, x, "row_ror:8")
        self.allred_rows(op, x, t)

    def wq_addr(self):
        if self.wqw == 128:
            return f"""v_mul_u32_u24 v{vT+4}, 48, v{vT}
        v_mad_u32_u24 v{vT+4}, v{vT+3}, 6, v{vT+4}  ; r0
        v_lshlrev_b32 v{vX}, 1, v{vT+4}
        v_and_b32 v{vT+5}, 7, v{vL}
        v_lshlrev_b32 v{vT+5}, 4, v{vT+5}           ; (l&7)*16
        v_lshl_or_b32 v{vWq}, v{vT+4}, 13, v{vT+5}
        s_lshr_b32 s{sT0}, s2, 7                   ; s>>2
        s_mul_i32 s{sT1}, s{sT0}, 0x240000
        s_mul_i32 s{sT0}, s{sT0}, 576
        s_lshl_b32 s{sT}, s{sKvh}, 9
        s_add_u32 s{sT1}, s{sT1}, s{sT}
        s_add_u32 s{sT}, s{sS}, {self.qrot}
        s_and_b32 s{sT}, s{sT}, 3
        s_lshl_b32 s{sT}, s{sT}, 7
        s_add_u32 s{sT1}, s{sT1}, s{sT}
        s_mov_b32 s{SX+2}, 576
        s_mov_b32 s{SX+3}, 0x20000
        s_mov_b32 s{SWQ+2}, {287*8192+128}
        s_mov_b32 s{SWQ+3}, 0x20000"""
        return f"""v_lshrrev_b32 v{vT+6}, 5, v{vL}
        v_mul_u32_u24 v{vT+4}, 12, v{vT}
        v_mad_u32_u24 v{vT+4}, v{vT+6}, 6, v{vT+4}  ; r0
        v_lshrrev_b32 v{vT+5}, 3, v{vL}
        v_xor_b32 v{vT+5}, v{vT+5}, v{vT+1}
        v_and_b32 v{vT+5}, 1, v{vT+5}
        v_lshlrev_b32 v{vT+5}, 12, v{vT+5}
        v_lshl_or_b32 v{vX}, v{vT+4}, 1, v{vT+5}
        v_and_b32 v{vT+5}, 31, v{vL}
        v_lshlrev_b32 v{vT+5}, 4, v{vT+5}
        v_lshl_or_b32 v{vWq}, v{vT+4}, 13, v{vT+5}
        v_and_b32 v{vT+5}, 7, v{vL}
        v_lshlrev_b32 v{vT+5}, 4, v{vT+5}           ; (l&7)*16
        s_mul_i32 s{sT1}, s{sS}, {72*8192}
        s_mul_i32 s{sT0}, s{sS}, 144
        s_lshl_b32 s{sT}, s{sKvh}, 9
        s_add_u32 s{sT1}, s{sT1}, s{sT}
        s_mov_b32 s{SX+2}, 144
        s_mov_b32 s{SX+3}, 0x20000
        s_mov_b32 s{SWQ+2}, {71*8192+512}
        s_mov_b32 s{SWQ+3}, 0x20000"""
    def wgmap(self):
        if self.xmap == 0:
            return f"s_and_b32 s{sKvh}, s2, 15\ns_and_b32 s{sG}, s2, 31"
        return (f"s_bfe_u32 s{sKvh}, s2, 0x20003\ns_and_b32 s{sG}, s2, 7\ns_lshl_b32 s{sG}, s{sG}, 2\n"
                f"s_or_b32 s{sG}, s{sG}, s{sKvh}\ns_and_b32 s{sKvh}, s{sG}, 15")
    def gen(self):
        a = self.a; R = self.R
        C = (128 ** -0.5) * math.log2(math.e)
        import struct
        Cbits = struct.unpack("<I", struct.pack("<f", C))[0]
        a(f"""
        s_cmp_ge_u32 s2, 256
        s_cbranch_scc1 L_end
        s_load_dwordx16 s[4:19], s[0:1], 0
        s_load_dwordx8 s[20:27], s[0:1], 64
        s_load_dwordx2 s[28:29], s[0:1], 96
        """)
        if self.stamps or self.amp: a("s_memrealtime s[96:97]")
        a(f"""
        v_lshrrev_b32 v{vT}, 6, v0
        v_and_b32 v{vL}, 63, v0
        v_readfirstlane_b32 s{sW}, v{vT}
        s_lshr_b32 s{sS}, s2, 5
        {self.wgmap()}
        v_lshrrev_b32 v{vT+1}, 4, v{vL}            ; l>>4
        v_and_b32 v{vT+2}, 8, v{vL}
        v_lshrrev_b32 v{vT+2}, 1, v{vT+2}
        v_or_b32 v{vT+3}, v{vT+1}, v{vT+2}          ; grp
        {self.wq_addr()}
        s_mov_b32 s{sStr}, 0x2000
        s_lshl_b32 s{sTag}, s{sKvh}, 21
        s_lshl_b32 s{sEoff}, s{sS}, 18
        s_add_u32 s{sTag}, s{sTag}, s{sEoff}
        s_lshl_b32 s{sEoff}, s{sW}, 12
        s_add_u32 s{sTag}, s{sTag}, s{sEoff}
        s_sub_u32 s{SK+2}, 0x40000, s{sEoff}
        s_mov_b32 s{SK+3}, 0x20000
        v_and_b32 v{vK}, 12, v{vL}
        v_or_b32 v{vK}, v{vK}, v{vT+1}
        v_lshlrev_b32 v{vK}, 2, v{vK}
        v_and_or_b32 v{vK}, v{vL}, 3, v{vK}
        v_lshlrev_b32 v{vK}, 4, v{vK}
        s_mov_b32 s{sT}, 0
        s_bitcmp1_b32 s{sG}, 4
        s_waitcnt lgkmcnt(0)
        s_cselect_b64 s[6:7], s[16:17], s[6:7]
        s_cselect_b64 s[4:5], s[14:15], s[4:5]
        s_cselect_b64 s[10:11], s[20:21], s[10:11]
        s_cselect_b64 s[8:9], s[18:19], s[8:9]
        s_cselect_b64 s[12:13], s[22:23], s[12:13]
        s_cselect_b32 s{sEoff}, 0x100, 0
        s_add_u32 s{SK}, s6, s{sTag}
        s_addc_u32 s{SK+1}, s7, 0
        """)
        for n in range(self.kfront): self.issue(n)
        a(f"""
        s_add_u32 s{SX}, s4, s{sT0}
        s_addc_u32 s{SX+1}, s5, 0
        s_add_u32 s{SWQ}, s10, s{sT1}
        s_addc_u32 s{SWQ+1}, s11, 0
        """)
        self.vm("x", f"buffer_load_dwordx3 {vr(vXd,3)}, v{vX}, {srd(SX)}, 0 offen")
        for t in range(6):
            if t == 0: so = "0"
            elif t == 1: so = f"s{sStr}"
            else:
                a(f"s_add_u32 s{sT0}, s{sStr if t == 2 else sT0}, s{sStr}"); so = f"s{sT0}"
            self.vm(f"wq{t}", f"buffer_load_dwordx4 {vr(vWQB+4*t)}, v{vWq}, {srd(SWQ)}, {so} offen {self.wqfl}")
        if self.stamps:
            a(f"v_writelane_b32 v{vStamp}, s96, 31")
            a(f"s_getreg_b32 s94, hwreg(HW_REG_XCC_ID)\nv_writelane_b32 v{vStamp}, s94, 30\ns_getreg_b32 s94, hwreg(HW_REG_HW_ID)\nv_writelane_b32 v{vStamp}, s94, 29")
        a(f"""
        s_add_u32 s{SV}, s8, s{sTag}
        s_addc_u32 s{SV+1}, s9, 0
        s_mov_b32 s{SV+2}, s{SK+2}
        s_mov_b32 s{SV+3}, 0x20000
        s_load_dword s{sTag}, s[28:29], s{sEoff}
        s_mul_i32 s{sT0}, s{sKvh}, {256*1152}
        s_mul_i32 s{sT1}, s{sS}, {32*1152}
        s_add_u32 s{sT0}, s{sT0}, s{sT1}
        s_add_u32 s{SWO}, s12, s{sT0}
        s_addc_u32 s{SWO+1}, s13, 0
        s_mov_b32 s{SWO+2}, {32*1152}
        s_mov_b32 s{SWO+3}, 0x20000
        """)
        if self.tlbwarm:
            self.vm("tw0", f"buffer_load_dword v{vT+14}, off, {srd(SV)}, 0")
            self.vm("tw1", f"buffer_load_dword v{vT+15}, off, {srd(SWO)}, 0")
        a(f"""
        s_mov_b32 s{SWS}, s28
        s_mov_b32 s{SWS+1}, s29
        s_mov_b32 s{SWS+2}, 0x400000
        s_mov_b32 s{SWS+3}, 0x20000
        s_mov_b32 s{sStr}, 0x8000
        v_lshlrev_b32 v{vLin}, 4, v{vL}
        s_mov_b32 s{sA}, 0x0f0f0f0f
        s_mov_b32 s{sA+1}, 0x0f0f0f0f
        v_mov_b32 v{vT+12}, 0xffff
        v_mov_b32 v{vT+13}, 0
        v_lshlrev_b64 v[{vT+12}:{vT+13}], v{vLin}, v[{vT+12}:{vT+13}]
        s_mov_b32 s{sSelLo}, 0x01000100
        s_mov_b32 s{sSelHi}, 0x03020302
        v_cndmask_b32_e64 v{vM}, 0, v{vT+12}, s[{sA}:{sA+1}]
        v_cndmask_b32_e64 v{vM+1}, 0, v{vT+13}, s[{sA}:{sA+1}]
        v_cndmask_b32_e64 v{vM+2}, v{vT+12}, 0, s[{sA}:{sA+1}]
        v_cndmask_b32_e64 v{vM+3}, v{vT+13}, 0, s[{sA}:{sA+1}]
        s_lshl_b32 s{sQslot}, s{sG}, 3
        s_add_u32 s{sT0}, s{sS}, {self.qrot}
        s_and_b32 s{sT0}, s{sT0}, 3
        s_and_b32 s{sT1}, s{sS}, 4
        s_or_b32 s{sT0}, s{sT0}, s{sT1}
        s_add_u32 s{sQslot}, s{sQslot}, s{sT0}
        s_lshl_b32 s{sQslot}, s{sQslot}, {8 if self.wqw == 128 else 10}
        s_add_u32 s{sQslot}, s{sQslot}, {QBOX}
        s_mov_b32 s{sPk0}, 0x07060501
        s_mov_b32 s{sPk1}, 0x07060502
        s_mov_b32 s{sPk2}, 0x07060503
        s_mov_b32 s{sCnt}, {RETRY}
        """)
        a(f"""v_mov_b32 v{vWo0}, v{vT+3}
        v_mov_b32 v{vWo1}, v{vT+5}
        v_mov_b32 v{vOW}, v{vT+1}""")
        if self.loc == 'q':
            a(f"s_getreg_b32 s{sXcc}, hwreg(HW_REG_XCC_ID, 0, 4)")
        if self.loc is not None and self.loc != 'q':
            assert self.roles
            a(f"""s_getreg_b32 s{sXcc}, hwreg(HW_REG_XCC_ID)
            s_lshl_b32 s{sXg}, s{sG}, 7
            s_add_u32 s{sXg}, s{sXg}, {XBOX}
            s_lshl_b32 s{sT0}, s{sS}, 3
            s_add_u32 s{sT0}, s{sT0}, s{sXg}
            s_waitcnt lgkmcnt(0)
            s_mul_i32 s{sTag}, s{sTag}, 1664525
            s_add_u32 s{sTag}, s{sTag}, 1013904223""")
            l = self.role(0)
            a(f"""v_mov_b32 v{vT+14}, s{sXcc}
            v_mov_b32 v{vT+15}, s{sTag}
            s_mov_b64 exec, 1""")
            if not self.diag & 32: self.vm("xst", f"buffer_store_dwordx2 v[{vT+14}:{vT+15}], off, {srd(SWS)}, s{sT0} sc1", 0)
            a(f"s_mov_b64 exec, -1\n{l}:")
        self.stamp("pre")

        NB1, NQG = self.NB1, self.NQG
        NQ = NQG + R
        tasks = {n: [] for n in range(0, 80)}
        T = lambda n, f: tasks[n].append(f)
        kf = self.kfront
        for t in range(6): T(max(kf, kf + t + R - 6), lambda t=t: self.q_mfma(t))
        nqp = kf + R - 1
        NB1 = max(NB1, nqp); NQG = max(NQG, NB1+1); NQ = NQG + R
        def qpart512():
            a(f"""
            v_and_b32 v{vT+2}, 15, v{vL}
            v_lshlrev_b32 v{vT+2}, 5, v{vT+2}
            v_and_b32 v{vT+3}, 1, v{vOW}
            v_lshl_or_b32 v{vT+2}, v{vT+3}, 4, v{vT+2}
            v_lshrrev_b32 v{vT+3}, 1, v{vOW}
            v_lshl_or_b32 v{vT+2}, v{vT+3}, 9, v{vT+2}
            s_lshl_b32 s{sT0}, s{sW}, 10
            v_add_u32 v{vT+2}, s{sT0}, v{vT+2}
            ds_write_b128 v{vT+2}, {vr(vD0)} offset:{L_QP}""")
        def qpart():
            a(f"""
            v_permlane32_swap_b32 v{vD0}, v{vD0+2}
            v_permlane32_swap_b32 v{vD0+1}, v{vD0+3}
            v_lshlrev_b32 v{vT+2}, 1, v{vWo1}            ; (l&7)*32
            v_and_b32 v{vT+3}, 1, v{vOW}
            v_lshl_or_b32 v{vT+2}, v{vT+3}, 4, v{vT+2}
            v_lshrrev_b32 v{vT+3}, 1, v{vOW}
            v_lshl_or_b32 v{vT+2}, v{vT+3}, 3, v{vT+2}
            s_lshl_b32 s{sT0}, s{sW}, 8
            """)
            self.dpp("v_add_f32", vD0, vD0+2, vD0, "row_ror:8")
            self.dpp("v_add_f32", vD0+1, vD0+3, vD0+1, "row_ror:8")
            a(f"""v_add_u32 v{vT+2}, s{sT0}, v{vT+2}
            s_mov_b32 exec_lo, 0x00ff00ff
            s_mov_b32 exec_hi, 0x00ff00ff
            ds_write_b64 v{vT+2}, v[{vD0}:{vD0+1}] offset:{L_QP}
            s_mov_b64 exec, -1""")
        T(nqp, qpart if self.wqw == 128 else qpart512)
        def bar1():
            a("s_waitcnt lgkmcnt(0)")
            if self.loc in (None, 'q'):
                a(f"s_mul_i32 s{sTag}, s{sTag}, 1664525")
                a(f"s_add_u32 s{sTag}, s{sTag}, 1013904223")
            if not self.diag & 2: a("s_barrier")
            self.stamp("bar1")
            l = self.role(0) if self.roles else self.only(0)
            if self.wqw == 128: a("s_mov_b64 exec, 0xffff")
            for w in range(6): a(f"ds_read_b128 {vr(vWQB+4*w)}, v{vLin} offset:{L_QP+(256 if self.wqw == 128 else 1024)*w}")
            for k, (x, y) in enumerate([(0,1),(2,3),(4,5),(0,2),(0,4)]):
                if k < 3: a(f"s_waitcnt lgkmcnt({4-2*k})")
                for h in (0, 2):
                    a(f"v_pk_add_f32 v[{vWQB+4*x+h}:{vWQB+4*x+h+1}], v[{vWQB+4*x+h}:{vWQB+4*x+h+1}], v[{vWQB+4*y+h}:{vWQB+4*y+h+1}]")
            self.pack(vWQB)
            if self.loc == 'q': a(f"v_xor_b32 v{vWQB+3}, s{sXcc}, v{vWQB+3}")
            if self.loc not in (None, 'q'):
                a(f"s_mov_b64 exec, -1\n{l}:")
                return
            if self.roles:
                self.vm("qpub", f"buffer_store_dwordx4 {vr(vWQB)}, v{vLin}, {srd(SWS)}, s{sQslot} offen {self.qst}", 0)
                a(f"s_mov_b64 exec, -1\n{l}:")
                return
            a(f"{l}:")
            self.vm_masked(0, "0xffff" if self.wqw == 128 else "-1", [("qpub", f"buffer_store_dwordx4 {vr(vWQB)}, v{vLin}, {srd(SWS)}, s{sQslot} offen {self.qst}")])
        T(NB1, bar1)
        if self.loc not in (None, 'q'):
            NXL = NB1 + self.loc
            def xld():
                l = self.role(0)
                a(f"v_lshlrev_b32 v{vWQB+6}, 3, v{vL}\ns_mov_b64 exec, 0xff")
                if not self.diag & 64: self.vm("xld", f"buffer_load_dwordx2 v[{vWQB+4}:{vWQB+5}], v{vWQB+6}, {srd(SWS)}, s{sXg} offen sc1", 0)
                a(f"s_mov_b64 exec, -1\n{l}:")
            T(NXL, xld)
            def xchk():
                l = self.role(0)
                if not self.diag & 64: self.wait("xld", 0)
                a(f"""s_mov_b64 exec, 0xff
                v_cmp_eq_u32 vcc, s{sXcc}, v{vWQB+4}
                v_cmp_eq_u32_e64 s[{sCm}:{sCm+1}], s{sTag}, v{vWQB+5}
                s_and_b64 vcc, vcc, s[{sCm}:{sCm+1}]
                s_cmp_eq_u64 vcc, exec
                s_cselect_b32 s{sLoc}, 1, {1 if self.diag & 96 else 0}
                s_mov_b64 vcc, -1
                v_mov_b32 v{vWQB+4}, s{sLoc}
                s_mov_b64 exec, {'0xffff' if self.wqw == 128 else '-1'}""")
                self.store_fl("qpub", f"buffer_store_dwordx4 {vr(vWQB)}, v{vLin}, {srd(SWS)}, s{sQslot} offen", 0)
                a(f"""ds_write_b32 v{vLin}, v{vWQB+4} offset:{L_FL}
                s_mov_b64 exec, -1
                s_waitcnt lgkmcnt(0)
                {l}:""")
            T(NXL+R, xchk)
            assert NXL + R < NQG
        def setup1():
            a(f"""
            s_mov_b32 s{sUp0}, 0x0c04000c
            s_mov_b32 s{sUp1}, 0x04020100
            s_mov_b32 s{SOUT}, s24
            s_mov_b32 s{SOUT+1}, s25
            s_mov_b32 s{SOUT+2}, 2304
            s_mov_b32 s{SOUT+3}, 0x20000
            s_mov_b32 s{sC}, {Cbits:#x}
            s_lshl_b32 s{sQg}, s{sG}, 11
            s_add_u32 s{sMLg}, s{sQg}, {MLBOX}
            s_lshl_b32 s{sQg}, s{sG}, {11 if self.wqw == 128 else 13}
            s_add_u32 s{sQg}, s{sQg}, {QBOX}
            s_add_u32 s{sQg2}, s{sQg}, 4096
            s_lshl_b32 s{sT0}, s{sS}, 3
            s_add_u32 s{sT0}, s{sT0}, s{sW}
            s_lshl_b32 s{sT0}, s{sT0}, 4
            s_add_u32 s{sMLs}, s{sMLg}, s{sT0}
            s_lshl_b32 s{sT0}, s{sG}, 13
            s_add_u32 s{sT0}, s{sT0}, {OBOX}
            s_lshl_b32 s{sT1}, s{sS}, 10
            s_add_u32 s{sOg}, s{sT0}, s{sT1}
            s_lshl_b32 s{sT1}, s{sW}, 10
            s_add_u32 s{sOs}, s{sT0}, s{sT1}
            s_lshl_b32 s{sT1}, s{sS}, 7
            s_add_u32 s{sOs}, s{sOs}, s{sT1}
            s_lshl_b32 s{sCi}, s{sS}, 4
            s_add_u32 s{sCi}, s{sCi}, s{sKvh}
            s_lshr_b32 s{sT0}, s{sG}, 4
            s_mul_i32 s{sT0}, s{sT0}, 72
            s_add_u32 s{sT1}, s{sT0}, s{sCi}
            s_lshl_b32 s{sOutO}, s{sT1}, 4
            s_lshl_b32 s{sPg}, s{sT1}, 12
            s_add_u32 s{sPg}, s{sPg}, {PBOX}
            s_lshl_b32 s{sT0}, s{sT0}, 12
            s_lshl_b32 s{sT1}, s{sW}, 15
            s_add_u32 s{sT0}, s{sT0}, s{sT1}
            s_lshl_b32 s{sT1}, s{sKvh}, 3
            s_add_u32 s{sT1}, s{sT1}, s{sS}
            s_lshl_b32 s{sT1}, s{sT1}, 5
            s_add_u32 s{sT0}, s{sT0}, s{sT1}
            s_add_u32 s{sPs}, s{sT0}, {PBOX}
            s_mov_b32 s{sExO}, 0x01010101
            s_mov_b32 s{sExO+1}, 0x01010101
            s_mov_b32 s{sExP}, 0x00ff00ff
            s_mov_b32 s{sT1}, 0x100000
            s_cmp_eq_u32 s{sW}, 7
            s_cselect_b32 s{sExP+1}, s{sExP}, 0
            s_cselect_b32 s{sT1}, 0x80, s{sT1}
            s_mov_b32 s{sExOut}, 0x00030003
            s_mov_b32 s{sExOut+1}, 0x00030003
            s_lshl_b32 s{sT0}, s{sS}, 3
            s_lshl_b64 s[{sExF}:{sExF+1}], 0xff, s{sT0}
            """)
            a(f"""
            v_lshl_or_b32 v{vOG}, v{vWo1}, 3, 0              ; (l&7)*128
            v_lshl_or_b32 v{vOG}, v{vWo0}, 4, v{vOG}          ; + slot*16
            v_lshlrev_b32 v{vPP}, 8, v{vWo1}                 ; (l&7)*4096
            v_and_b32 v{vT}, 1, v{vOW}                       ; (l>>4)&1
            v_lshl_or_b32 v{vPP}, v{vT}, 4, v{vPP}
            v_lshrrev_b32 v{vT+1}, 1, v{vOW}                 ; l>>5
            v_lshl_or_b32 v{vPP}, v{vT+1}, 15, v{vPP}
            v_and_b32 v{vOut}, 1, v{vL}
            v_lshl_add_u32 v{vOut}, v{vOut}, 2, v{vOW}
            v_lshlrev_b32 v{vOut}, 1, v{vOut}
            v_lshrrev_b32 v{vFW}, 2, v{vWo1}                 ; (l&7)*4
            s_lshr_b32 s{sT0}, s{sW}, 2
            s_lshl_b32 s{sT0}, s{sT0}, 5
            v_add_u32 v{vFR}, s{sT0}, v{vFW}
            v_and_b32 v{vOP}, 0x38, v{vL}
            v_lshlrev_b32 v{vOP}, 1, v{vOP}                  ; (l>>3)*16
            v_mul_u32_u24 v{vOR}, {L_OSTR//16}, v{vWo1}       ; (l&7)*1040
            v_add_u32 v{vOR}, v{vOR}, v{vOP}
            s_lshl_b32 s{sT0}, s{sW}, 7
            v_add_u32 v{vOR}, s{sT0}, v{vOR}
            v_and_b32 v{vT+2}, 15, v{vL}
            v_lshlrev_b32 v{vOW}, 5, v{vT+2}
            v_lshl_or_b32 v{vOW}, v{vT}, 4, v{vOW}
            v_lshl_or_b32 v{vOW}, v{vT+1}, 9, v{vOW}
            s_mul_i32 s{sT0}, s{sW}, {L_OSTR}
            v_add_u32 v{vOW}, s{sT0}, v{vOW}
            v_mul_u32_u24 v{vWo0}, {4*1152}, v{vWo0}
            v_add_u32 v{vWo0}, v{vWo0}, v{vWo1}
            s_lshl_b32 s{sT0}, s{sW}, 7
            v_add_u32 v{vWo0}, s{sT0}, v{vWo0}
            v_add_u32 v{vWo1}, s{sT1}, v{vWo0}
            v_and_b32 v{vX}, 0xff, v{vK}
            v_lshrrev_b32 v{vT}, 1, v{vK}
            v_and_b32 v{vT}, 0x100, v{vT}
            v_or_b32 v{vX}, v{vX}, v{vT}
            """)
        T(NB1+1, setup1)
        assert NQG >= NB1+1
        nqg = 2 if self.wqw == 128 else 8
        qb = vWQB if nqg == 2 else vKV + 96
        assert nqg == 2 or NQ < 24
        qg = [f"buffer_load_dwordx4 {vr(qb+4*k)}, v{vLin}, {srd(SWS)}, s{sQg if k < 4 else sQg2} offen offset:{1024*(k%4)} sc1" for k in range(nqg)]
        def t_qg():
            if self.roles:
                l = self.role(1)
                for k in range(nqg): self.vm(f"qg{k}", qg[k], 1)
                a(f"{l}:")
                return
            self.vm_masked(1, "-1", [(f"qg{k}", qg[k]) for k in range(nqg)])
        T(NQG, t_qg)
        def t_q():
            if not self.roles: self.wait(f"qg{nqg-1}")
            l = self.only(1)
            if self.roles: self.wait(f"qg{nqg-1}", 1)
            self.stamp("qchk")
            self.check_retry([qb+4*k+3 for k in range(nqg)], lambda: a("\n".join(qg)), die=(vT+4 if self.loc == 'q' else None))
            self.stamp("qok")
            if self.loc == 'q':
                a(f"""v_cmp_ne_u32 vcc, s{sXcc}, v{vT+4}
                v_cmp_ne_u32_e64 s[{sCm}:{sCm+1}], s{sXcc}, v{vT+5}
                s_or_b64 vcc, vcc, s[{sCm}:{sCm+1}]
                s_cselect_b32 s{sLoc}, 0, 1
                v_mov_b32 v{vT+4}, s{sLoc}
                ds_write_b32 v{vLin}, v{vT+4} offset:{L_FL}""")
            self.unpack([qb+4*k for k in range(nqg)])
            for (x, y) in ([(0,1)] if nqg == 2 else [(0,1),(2,3),(4,5),(6,7),(0,2),(4,6),(0,4)]):
                for h in (0, 2):
                    a(f"v_pk_add_f32 v[{qb+4*x+h}:{qb+4*x+h+1}], v[{qb+4*x+h}:{qb+4*x+h+1}], v[{qb+4*y+h}:{qb+4*y+h+1}]")
            a(f"""
            v_lshlrev_b32 v{vT+2}, 3, v{vL}
            v_cvt_pk_bf16_f32 v{vT}, v{qb}, v{qb+1}
            v_cvt_pk_bf16_f32 v{vT+1}, v{qb+2}, v{qb+3}
            ds_write_b64 v{vT+2}, v[{vT}:{vT+1}] offset:{L_QB}
            s_waitcnt lgkmcnt(0)
            {l}:
            {'' if self.diag & 8 else 's_barrier'}""")
            self.stamp("bar2")
            if self.loc is not None: a(f"v_mov_b32 v{vT+1}, 0\nds_read_b32 v{vT}, v{vT+1} offset:{L_FL}")
            a(f"""ds_read_b128 {vr(vBB)}, v{vX} offset:{L_QB}
            s_waitcnt lgkmcnt(0)""")
            if self.loc is not None:
                a(f"v_readfirstlane_b32 s{sLoc}, v{vT}")
                if self.stamps: a(f"v_writelane_b32 v{vStamp}, s{sLoc}, 28")
            for i in range(4): a(f"v_cndmask_b32_e64 v{vBA+i}, 0, v{vBB+i}, s[{sA}:{sA+1}]")
            for i in range(4): a(f"v_cndmask_b32_e64 v{vBB+i}, v{vBB+i}, 0, s[{sA}:{sA+1}]")
        T(NQ, t_q)
        u = 0; n = NQ
        while u < 16:
            avail = (n - R + 1) // 2
            us = list(range(u, min(16, avail, u + (self.qk_per_step if n > NQ else 1))))
            if us:
                def f(us=us):
                    if self.diag & 4: return
                    for x in us: self.qk_mfma(x)
                    self.qk_fin(us)
                T(n, f); u = us[-1] + 1
            n += 1
        nsm = n - 1
        assert nsm == 31 + R, nsm
        T(nsm, self.softmax_max)
        T(nsm, lambda: self.stamp("smax"))
        T(nsm, lambda: self.softmax_p([0,1,2,3]))
        T(nsm+1, lambda: self.softmax_p([4,5,6,7,8,9]))
        T(nsm+2, lambda: self.softmax_p([10,11,12,13,14,15]))
        T(nsm+2, self.ml_publish)
        j = 0; n = nsm + 3
        pvlast = None
        while j < 32:
            avail = n - R - 32 + 1
            js = list(range(j, min(32, avail, j + self.pv_per_step)))
            if js:
                def f(js=js):
                    if self.diag & 16: return
                    pend = None
                    for x in js:
                        m = self.pv(x)
                        if pend: pend()
                        pend = m
                    pend()
                T(n, f); j = js[-1] + 1
            n += 1
        nlast = n - 1
        assert nlast == 63 + R
        NML = self.NML
        mg = [f"buffer_load_dwordx3 {vr(vWQB+4*k,3)}, v{vLin}, {srd(SWS)}, s{sMLg} offen offset:{1024*k} sc1" for k in range(2)]
        def mlg():
            if self.roles:
                l = self.role(2)
                for k in range(2): self.vm(("mlg0","mlg")[k], mg[k], 2)
                a(f"{l}:")
                return
            self.vm_masked(2, "-1", [("mlg0", mg[0]), ("mlg", mg[1])])
        def t_ml():
            mlg()
        T(NML, t_ml)
        def t_mlchk():
            if not self.roles: self.wait("mlg")
            l = self.only(2)
            if self.roles: self.wait("mlg", 2)
            self.stamp("mlchk")
            self.check_retry([vWQB+2, vWQB+6], lambda: a("\n".join(mg)))
            m0, l0, m1, l1 = vWQB, vWQB+1, vWQB+4, vWQB+5
            x0, x1 = vWQB+8, vWQB+9
            a(f"v_mov_b32 v{x0}, v{m0}\nv_mov_b32 v{x1}, v{m1}")
            self.wave_allred2("v_max_f32", x0, x1)
            a(f"""v_sub_f32 v{m0}, v{m0}, v{x0}
            v_sub_f32 v{m1}, v{m1}, v{x1}
            v_exp_f32 v{m0}, v{m0}
            v_exp_f32 v{m1}, v{m1}
            s_nop 0
            v_mul_f32 v{x0}, v{m0}, v{l0}
            v_mul_f32 v{x1}, v{m1}, v{l1}""")
            self.wave_allred2("v_add_f32", x0, x1)
            a(f"""v_rcp_f32 v{x0}, v{x0}
            v_rcp_f32 v{x1}, v{x1}
            s_nop 0
            v_mul_f32 v{m0}, v{m0}, v{x0}
            v_mul_f32 v{m1}, v{m1}, v{x1}
            s_mov_b64 exec, s[{sExF}:{sExF+1}]
            ds_write_b32 v{vFW}, v{m0} offset:{L_F}
            ds_write_b32 v{vFW}, v{m1} offset:{L_F+32}
            s_mov_b64 exec, -1
            {l}:""")
        T(NML+R, t_mlchk)
        assert NML + R < nlast and NML > nsm + 3

        seq = [self.item(k) for k in range(kf)] + [f"wq{t}" for t in range(6)] + [self.item(k) for k in range(kf, 72)]
        wos = self.wosched if self.wosched is not None else {64+k: 1 for k in range(self.wo_early)}
        upto = {n: n for n in range(kf, nlast+1)}
        for nb, B in ((NB1, self.boost1), (NQ, self.boost2), (NML+R, self.boost3)):
            for k in range(B+1): upto[nb+k] = max(upto[nb+k], nb+B)
        if self.ramp:
            n0, rate = self.ramp
            wos = {}; prev = 0
            for n in range(n0, nlast+1):
                t = n0 - 1 + int((n - n0 + 1)*rate)
                upto[n] = t
                k = min(8, max(0, t - 63)); wos[n] = k - prev; prev = k
        nxt, nwo = kf, 64
        for n in range(kf, nlast+1):
            if n - R < 64: self.wait(seq[n + 6 - R])
            while nxt <= min(63, upto[n]): self.issue(nxt); nxt += 1
            for k in range(wos.get(n, 0)): self.issue(nwo); nwo += 1
            if n == nlast: self.stamp("vlast")
            for f in tasks[n]: f()
        for n in range(nwo, 72): self.issue(n)
        a(f"""ds_write_b128 v{vOW}, {vr(vO)} offset:{L_OP}
        s_waitcnt lgkmcnt(0)
        s_barrier""")
        self.stamp("bar3")
        a(f"""ds_read_b128 {vr(vT)}, v{vOR} offset:{L_OP}
        ds_read_b32 v{vT+4}, v{vFR} offset:{L_F}
        s_waitcnt lgkmcnt(0)""")
        for r in range(4): a(f"v_mul_f32 v{vT+r}, v{vT+r}, v{vT+4}")
        for ctl in ("quad_perm:[1,0,3,2]", "quad_perm:[2,3,0,1]", "row_half_mirror"):
            for r in range(4): self.dpp("v_add_f32", vT+r, vT+r, vT+r, ctl)
        self.pack(vT)
        if self.diag & 1:
            self.stamp("opre"); a("s_waitcnt vmcnt(0)"); self.stamp("woarr")
        a(f"s_mov_b64 exec, s[{sExO}:{sExO+1}]")
        self.store_fl("opub", f"buffer_store_dwordx4 {vr(vT)}, v{vOP}, {srd(SWS)}, s{sOs} offen", None, self.ost)
        a("s_mov_b64 exec, -1")
        if self.diag & 1:
            a("s_waitcnt vmcnt(0)"); self.stamp("stack")
        if self.ogwait: self.wait("it71")
        g0 = vT + 8
        og = f"buffer_load_dwordx4 {vr(g0)}, v{vOG}, {srd(SWS)}, s{sOg} offen {self.old}"
        self.vm("og", og)
        self.stamp("opub")
        a("s_waitcnt vmcnt(0)")
        self.stamp("og1")
        self.check_retry([g0+3], lambda: a(og))
        self.stamp("ogok")
        self.unpack([g0])
        for ctl in ("quad_perm:[1,0,3,2]", "quad_perm:[2,3,0,1]", "row_half_mirror"):
            for r in range(4): self.dpp("v_add_f32", g0+r, g0+r, g0+r, ctl)
        for r in range(4): a(f"v_cvt_pk_bf16_f32 v{g0+r}, v{g0+r}, v{g0+r}")
        pend = None
        for i in range(4):
            A = vA0 if i % 2 == 0 else vA1
            self.build_A(A, g0+i)
            if pend: pend()
            def m(i=i, A=A):
                self.mfma(vD0, A, vKV + 4*i, None if i == 0 else vD0)
                self.mfma(vD1, A, vKV + 16 + 4*i, None if i == 0 else vD1)
            pend = m
        pend()
        for r in range(4): a(f"v_permlane32_swap_b32 v{vD0+r}, v{vD1+r}")
        for r in range(4): self.dpp("v_add_f32", vD0+r, vD1+r, vD0+r, "row_ror:8")
        self.pack(vD0)
        a(f"s_mov_b64 exec, s[{sExP}:{sExP+1}]")
        self.vm("ppub", f"buffer_store_dwordx4 {vr(vD0)}, v{vPP}, {srd(SWS)}, s{sPs} offen sc1")
        a("s_mov_b64 exec, -1")
        self.stamp("ppub")
        a(f"""s_cmp_lg_u32 s{sW}, {self.consw}
        s_cbranch_scc1 L_fin
        s_cmp_ge_u32 s{sCi}, 72
        s_cbranch_scc1 L_fin""")
        p0 = vKV + 32
        def pg():
            for t in range(4): a(f"buffer_load_dwordx4 {vr(p0+4*t)}, v{vLin}, {srd(SWS)}, s{sPg} offen offset:{t*1024} sc1")
        pg()
        a("s_waitcnt vmcnt(0)")
        self.stamp("pg1")
        self.check_retry([p0+3, p0+7, p0+11, p0+15], pg)
        self.stamp("pgok")
        self.unpack([p0, p0+4, p0+8, p0+12])
        for (x, y) in [(0,1),(2,3),(0,2)]:
            for h in (0, 2):
                a(f"v_pk_add_f32 v[{p0+4*x+h}:{p0+4*x+h+1}], v[{p0+4*x+h}:{p0+4*x+h+1}], v[{p0+4*y+h}:{p0+4*y+h+1}]")
        a(f"""v_permlane32_swap_b32 v{p0}, v{p0+2}
        v_permlane32_swap_b32 v{p0+1}, v{p0+3}
        v_add_f32 v{p0}, v{p0}, v{p0+2}
        v_add_f32 v{p0+1}, v{p0+1}, v{p0+3}
        v_permlane16_swap_b32 v{p0}, v{p0+1}
        v_add_f32 v{p0}, v{p0}, v{p0+1}""")
        for ctl in ("row_ror:8", "row_ror:4", "quad_perm:[2,3,0,1]"):
            self.dpp("v_add_f32", p0, p0, p0, ctl)
        a(f"""v_cvt_pk_bf16_f32 v{p0}, v{p0}, v{p0}
        s_mov_b64 exec, s[{sExOut}:{sExOut+1}]
        buffer_store_short v{p0}, v{vOut}, {srd(SOUT)}, s{sOutO} offen
        s_cmp_lg_u32 s{sCi}, 0
        s_cbranch_scc1 L_fin2
        v_mov_b32 v{vT}, s{sTag}
        s_mov_b64 exec, 1
        buffer_store_dword v{vT}, off, {srd(SWS)}, s{sEoff} sc1
        L_fin2:
        s_mov_b64 exec, -1""")
        a("L_fin:")
        if self.amp:
            self.stamp("end")
            a(f"""s_cmp_lg_u32 s2, {self.amp[2] if len(self.amp) > 2 else 0}
            s_cbranch_scc1 L_end
            s_cmp_lg_u32 s{sW}, {self.amp[3] if len(self.amp) > 3 else 0}
            s_cbranch_scc1 L_end
            s_memrealtime s[4:5]
            s_waitcnt lgkmcnt(0)
            s_sub_u32 s6, s16, s96
            s_min_u32 s6, s6, 8000
            s_mul_i32 s6, s6, {int(self.amp[1]*16)}
            s_lshr_b32 s6, s6, 4
            s_mov_b32 s7, 2000000
            L_spin:
            s_memrealtime s[8:9]
            s_waitcnt lgkmcnt(0)
            s_sub_u32 s8, s8, s4
            s_cmp_ge_u32 s8, s6
            s_cbranch_scc1 L_end
            s_sub_u32 s7, s7, 1
            s_cbranch_scc0 L_spin
            s_branch L_end""")
        if self.stamps:
            self.stamp("end")
            a(f"""s_lshl_b32 s{sT0}, s2, 3
            s_add_u32 s{sT0}, s{sT0}, s{sW}
            s_lshl_b32 s{sT0}, s{sT0}, 7
            s_add_u32 s{sT0}, s{sT0}, {STAMP}
            v_lshlrev_b32 v{vT}, 2, v{vL}
            s_mov_b32 exec_hi, 0
            buffer_store_dword v{vStamp}, v{vT}, {srd(SWS)}, s{sT0} offen
            s_waitcnt vmcnt(0)""")
        a("L_end:\ns_endpgm")
        lines, nn = pad(self.L)
        self.nops = nn
        return "\n".join(lines) + "\n"

    def wave_allred2(self, op, x, y):
        for ctl in ("quad_perm:[1,0,3,2]", "quad_perm:[2,3,0,1]", "row_half_mirror", "row_ror:8"):
            self.dpp(op, x, x, x, ctl); self.dpp(op, y, y, y, ctl)
        t, u = vT, vT+1
        for sw in ("v_permlane16_swap_b32", "v_permlane32_swap_b32"):
            self.a(f"""v_mov_b32 v{t}, v{x}
            v_mov_b32 v{u}, v{y}
            {sw} v{x}, v{t}
            {sw} v{y}, v{u}
            {op} v{x}, v{x}, v{t}
            {op} v{y}, v{y}, v{u}""")

def header():
    ref = open("concat_heads__gqa_block_cached__gqa_block_cached__decode.s.ref").read().split("\n")
    out = []
    for l in ref:
        if l.startswith("; @launch"): break
        out.append(l)
    return "\n".join(out) + "\n"

def gen(**kw):
    g = G(**kw)
    body = g.gen()
    txt = wrap(body, 256, 512, LDS_BYTES, vgpr=NVGPR, header=header())
    return txt, g

if __name__ == "__main__":
    kw = eval(sys.argv[2]) if len(sys.argv) > 2 else {}
    txt, g = gen(**kw)
    open(sys.argv[1], "w").write(txt)
    print("nops", g.nops, "lines", txt.count("\n"), g.stamp_names)
```

```python
import math, sys
from asmlib import wrap
from hz import pad

QBOX, MLBOX, OBOX, PBOX, STAMP = 0x180000, 0x20000, 0x30000, 0x70000, 0x100000
XBOX = 0x1c0000
L_QP, L_QB, L_F, L_FL, L_OP, L_OSTR = 0, 8192, 8704, 7680, 9216, 1040
L_PZ = 1536
LDS_BYTES = L_OP + 8*L_OSTR
RETRY = 1 << 16

sW, sS, sKvh, sG, sT, sStr, sCnt = 30, 31, 33, 34, 35, 68, 69
SK, SV, SWQ, SX, SWO, SWS, SDBG, SOUT = 36, 40, 44, 48, 52, 56, 60, 64
sA = 70
sSelLo, sSelHi, sC = 72, 73, 74
sQslot, sQg, sMLs, sMLg, sOs, sOg, sPs, sPg, sOutO = 75, 76, 77, 78, 79, 80, 81, 82, 83
sExO, sExP, sExOut, sExF, sTmp2 = 84, 86, 88, 90, 92
sT0, sT1 = 3, 32
sTag, sEoff, sCi = 60, 61, 101
sPk0, sPk1, sPk2, sUp0, sUp1 = 62, 63, 98, 99, 100
sWo = 18
sQg2, sLoc, sXcc, sXg = 23, 22, 21, 20
sExC = 24
vPW, vPR = 4, 13
sCm = 26
sStamp0 = 94

vTid, vL, vK, vLin, vWq, vX = 0, 1, 2, 3, 4, 5
vM = 6
vXd = 10
vOW, vOR, vFR, vOP, vOG, vWo0, vWo1, vPP, vOut, vFW = 14, 15, 16, 17, 18, 19, 20, 21, 22, 23
vBA, vBB = 24, 28
vA0, vA1 = 32, 36
vO = 40
vD0, vD1 = 44, 48
vS = 52
vMc, vLs, vTg, vMx = 68, 69, 70, 71
vT = 72
vWQB = 88
vKV = 112
vStamp = 240
NVGPR = 244

def srd(n): return f"s[{n}:{n+3}]"
def vr(n, k=4): return f"v[{n}:{n+k-1}]"

class G:
    def __init__(self, R=3, NB1=2, NQG=8, NML=52, kfl="nt", vfl="nt", wqfl="nt", wofl="nt", stamps=False,
                 qk_per_step=2, pv_per_step=3, wo_early=3, consw=0, kfront=1, tlbwarm=False, amp=None, ost='sc1', old='sc1', qst='sc1', mst='sc1', xmap=0, qrot=0, wqw=128, roles=False, boost1=0, boost2=0, boost3=0, wosched=None, diag=0, ramp=None, ogwait=False, loc=None, touch=None, ntouch=1, p2=False, redw=0, order='KXWWWWWW|', wobar=None, pst='sc1', pld='sc1', ofl='', efl='sc1', pro=0):
        self.__dict__.update(locals()); del self.__dict__['self']
        self.L = []
        self.ops = []; self.done = -1
        self.nlab = 0; self.nstamp = 0; self.stamp_names = []

    def a(self, s):
        for l in s.split("\n"):
            l = l.split(';')[0].strip()
            if l: self.L.append(l if l.endswith(":") else "    " + l)
    def lab(self, p="L"):
        self.nlab += 1; return f"{p}_{self.nlab}"
    def vm(self, name, text, cond=None):
        self.a(text); self.ops.append((name, cond))
    def wait(self, name, cond=None, extra=""):
        idx = max(i for i, o in enumerate(self.ops) if o[0] == name)
        if idx <= self.done:
            if extra: self.a(f"s_waitcnt {extra}")
            return
        n = sum(1 for o in self.ops[idx+1:] if o[1] is None or o[1] == cond)
        assert n <= 63
        if cond is None:
            x = [o for o in self.ops[idx+1:] if o[1] is not None]
            assert len(set(o[1] for o in x)) <= 1
            if x:
                l = self.lab("RW")
                self.a(f"s_waitcnt vmcnt({n+len(x)})\ns_cbranch_vccnz {l}\ns_waitcnt vmcnt({n}) {extra}\n{l}:")
                self.done = idx
                return
        self.a(f"s_waitcnt vmcnt({n}) {extra}")
        if cond is None: self.done = idx
        else: self.ops = [o if (i > idx or o[1] != cond) else (o[0], 'gone') for i, o in enumerate(self.ops)]; self.purge()
    def purge(self):
        keep = [i for i, o in enumerate(self.ops) if o[1] != 'gone']
        self.done = sum(1 for i in keep if i <= self.done) - 1
        self.ops = [self.ops[i] for i in keep]
    def role(self, w):
        l = self.lab("ROLE")
        self.a(f"s_cmp_eq_u32 s{sW}, {w}\ns_cselect_b64 vcc, -1, 0\ns_cbranch_scc0 {l}")
        return l
    def stamp(self, name):
        if self.amp and self.amp[0] == name: self.a("s_memrealtime s[16:17]")
        if not self.stamps: return
        if self.stamps is not True and name not in self.stamps and name != "end": return
        k = self.nstamp; self.nstamp += 1; self.stamp_names.append(name)
        assert k < 28
        self.a(f"""s_memrealtime s[94:95]
        s_waitcnt lgkmcnt(0)
        v_writelane_b32 v{vStamp}, s94, {k}""")
    def vm_masked(self, w, mask, ops):
        self.a(f"s_cmp_eq_u32 s{sW}, {w}\ns_cselect_b64 exec, {mask}, 0")
        for name, text in ops: self.vm(name, text)
        self.a("s_mov_b64 exec, -1")
    def store_fl(self, name, text, cond=None, fl='sc1'):
        if self.loc is None:
            self.vm(name, text + " " + fl, cond); return
        l1, l2 = self.lab("FAR"), self.lab("STD")
        self.a(f"s_cmp_eq_u32 s{sLoc}, 0\ns_cbranch_scc1 {l1}\n{text}\ns_branch {l2}\n{l1}:")
        self.vm(name, text + " sc1", cond)
        self.a(f"{l2}:")
    def only(self, w):
        l = self.lab("SKIP")
        self.a(f"s_cmp_lg_u32 s{sW}, {w}\ns_cbranch_scc1 {l}")
        return l

    def mfma(self, d, a, b, c):
        cc = "0" if c is None else vr(c)
        self.a(f"v_mfma_f32_16x16x32_bf16 {vr(d)}, {vr(a)}, {vr(b)}, {cc}")
    def dpp(self, op, d, s0, s1, ctl, bc=False):
        t = f"{op}_dpp v{d}, v{s0}" + (f", v{s1}" if s1 is not None else "") + f" {ctl} row_mask:0xf bank_mask:0xf" + (" bound_ctrl:0" if bc else "")
        self.a(t)
    def allred_rows(self, op, x, t):
        self.a(f"""v_mov_b32 v{t}, v{x}
        v_permlane16_swap_b32 v{x}, v{t}
        {op} v{x}, v{x}, v{t}
        v_mov_b32 v{t}, v{x}
        v_permlane32_swap_b32 v{x}, v{t}
        {op} v{x}, v{x}, v{t}""")

    def pack(self, r):
        self.a(f"""v_perm_b32 v{r}, v{r}, v{r+3}, s{sPk0}
        v_perm_b32 v{r+1}, v{r+1}, v{r+3}, s{sPk1}
        v_perm_b32 v{r+2}, v{r+2}, v{r+3}, s{sPk2}
        v_mov_b32 v{r+3}, s{sTag}""")
    def unpack(self, rs):
        for r in rs: self.a(f"v_perm_b32 v{r+3}, v{r+1}, v{r}, s{sUp0}")
        for r in rs: self.a(f"v_perm_b32 v{r+3}, v{r+2}, v{r+3}, s{sUp1}")
    def check_retry(self, tags, reload_fn, die=None, base='-1'):
        top, done = self.lab("CHK"), self.lab("OK")
        self.a(f"{top}:")
        if die is not None:
            for k, t in enumerate(tags): self.a(f"v_xor_b32 v{die+k}, s{sTag}, v{t}")
            self.a(f"v_or_b32 v{die+2}, v{die}, v{die+1}\nv_cmp_lt_u32 vcc, 15, v{die+2}")
            assert len(tags) == 2
            tags = tags[:1]
        else: self.a(f"v_cmp_ne_u32 vcc, s{sTag}, v{tags[0]}")
        if len(tags) == 1:
            self.a(f"s_cbranch_vccz {done}")
        elif len(tags) == 8:
            for k, t in enumerate(tags[1:]):
                p = sCm + 2*(k % 2)
                self.a(f"v_cmp_ne_u32_e64 s[{p}:{p+1}], s{sTag}, v{t}")
                if k: q = sCm + 2*((k-1) % 2); self.a(f"s_or_b64 vcc, vcc, s[{q}:{q+1}]")
            self.a(f"s_or_b64 vcc, vcc, s[{sCm}:{sCm+1}]")
            self.a(f"s_cbranch_scc0 {done}")
        else:
            prs = [sCm, sCm+2, sTmp2]
            for k, t in enumerate(tags[1:]): self.a(f"v_cmp_ne_u32_e64 s[{prs[k]}:{prs[k]+1}], s{sTag}, v{t}")
            if len(tags) == 4:
                self.a(f"s_or_b64 s[{prs[1]}:{prs[1]+1}], s[{prs[1]}:{prs[1]+1}], s[{prs[2]}:{prs[2]+1}]")
                self.a(f"s_or_b64 s[{prs[0]}:{prs[0]+1}], s[{prs[0]}:{prs[0]+1}], s[{prs[1]}:{prs[1]+1}]")
            self.a(f"s_or_b64 vcc, vcc, s[{prs[0]}:{prs[0]+1}]")
            self.a(f"s_cbranch_scc0 {done}")
        self.a(f"""s_cmp_eq_u32 s{sCnt}, 0
        s_cbranch_scc1 {done}
        s_sub_u32 s{sCnt}, s{sCnt}, 1
        s_mov_b64 exec, vcc""")
        reload_fn()
        self.a(f"""s_mov_b64 exec, {base}
        s_waitcnt vmcnt(0)
        s_branch {top}
        {done}:""")

    def item(self, n):
        if n < 0: return f"wq{n+6}"
        return f"it{n}"
    def issue(self, n):
        R = self.R
        if n < 0:
            t = n + 6
            if t == 1: self.a(f"s_mov_b32 s{sWo}, 0x2000")
            elif t > 1: self.a(f"s_add_u32 s{sWo}, s{sWo}, 0x2000")
            self.vm(f"wq{t}", f"buffer_load_dwordx4 {vr(vWQB+4*t)}, v{vWq}, {srd(SWQ)}, {'0' if t == 0 else 's%d' % sWo} offen {self.wqfl}")
        elif n < 64:
            k = n & 31
            if k % 4 == 0 and n > 0:
                if k == 0: self.a(f"s_mov_b32 s{sT}, 0")
                else: self.a(f"s_add_u32 s{sT}, s{sT}, s{sStr}")
            reg = vKV + 4*k
            if n < 32:
                so = "0" if (self.pro and n < 4) else f"s{sT}"
                self.vm(self.item(n), f"buffer_load_dwordx4 {vr(reg)}, v{vK}, {srd(SK)}, {so} offen offset:{(k%4)*1024} {self.kfl}")
            else:
                self.vm(self.item(n), f"buffer_load_dwordx4 {vr(reg)}, v{vLin}, {srd(SV)}, s{sT} offen offset:{(k%4)*1024} {self.vfl}")
        else:
            k = n - 64
            va = vWo0 if k < 4 else vWo1
            self.vm(self.item(n), f"buffer_load_dwordx4 {vr(vKV+4*k)}, v{va}, {srd(SWO)}, 0 offen offset:{(k%4)*1152} {self.wofl}")

    def build_A(self, dst, rep):
        for i in range(4): self.a(f"v_and_b32 v{dst+i}, v{rep}, v{vM+i}")

    def q_mfma(self, t):
        A = vA0 if t % 2 == 0 else vA1
        rep = vT + (t % 2)
        sel = sSelLo if t % 2 == 0 else sSelHi
        self.a(f"v_perm_b32 v{rep}, v{vXd + t//2}, v{vXd + t//2}, s{sel}")
        self.build_A(A, rep)
        self.mfma(vD0, A, vWQB + 4*t, None if t == 0 else vD0)

    def qk_mfma(self, u):
        D = vD0 if u % 2 == 0 else vD1
        self.mfma(D, vKV + 8*u, vBA, None)
        self.mfma(D, vKV + 8*u + 4, vBB, D)
    def qk_fin(self, us):
        for u in us:
            D = vD0 if u % 2 == 0 else vD1
            self.dpp("v_add_f32", vS+u, D+1, D, "quad_perm:[1,1,1,1]")
            self.dpp("v_add_f32", D+2, D+3, D+2, "quad_perm:[0,1,3,3]")
        for u in us:
            D = vD0 if u % 2 == 0 else vD1
            self.dpp("v_add_f32", vS+u, D+2, vS+u, "quad_perm:[2,2,2,2]")
        for u in us:
            if u == 0: pass
            elif u == 1: self.a(f"v_max_f32 v{vMx}, v{vS}, v{vS+1}")
            else: self.a(f"v_max_f32 v{vMx}, v{vMx}, v{vS+u}")

    def softmax_max(self):
        t = vT
        self.dpp("v_mov_b32", vMc, vMx, None, "quad_perm:[0,0,0,0]")
        self.dpp("v_max_f32", vMc, vMc, vMc, "row_half_mirror")
        self.allred_rows("v_max_f32", vMc, t)
        self.a(f"v_mul_f32 v{vMc}, s{sC}, v{vMc}")
    def softmax_p(self, us):
        for j, u in enumerate(us):
            self.a(f"v_fma_f32 v{vS+u}, v{vS+u}, s{sC}, -v{vMc}")
        for j, u in enumerate(us):
            self.dpp("v_exp_f32", vT+j, vS+u, None, "quad_perm:[0,0,0,0]")
        for j, u in enumerate(us):
            self.a(f"v_cvt_pk_bf16_f32 v{vS+u}, v{vT+j}, v{vT+j}")
            if u == 0: self.a(f"v_mov_b32 v{vLs}, v{vT+j}")
            else: self.a(f"v_add_f32 v{vLs}, v{vLs}, v{vT+j}")
    def ml_publish(self):
        self.dpp("v_add_f32", vLs, vLs, vLs, "row_half_mirror")
        self.allred_rows("v_add_f32", vLs, vT)
        self.a(f"v_mov_b32 v{vTg}, s{sTag}\nv_lshlrev_b32 v{vT}, 7, v{vL}\ns_mov_b64 exec, 0x101")
        self.store_fl("mlpub", f"buffer_store_dwordx3 v[{vMc}:{vTg}], v{vT}, {srd(SWS)}, s{sMLs} offen", None, self.mst)
        self.a("s_mov_b64 exec, -1")
    def pv(self, j):
        A = vA0 if j % 2 == 0 else vA1
        P = vS + (j >> 1)
        if j % 2 == 0:
            self.a(f"v_and_b32 v{A}, v{P}, v{vM}\nv_and_b32 v{A+1}, v{P}, v{vM+1}")
            self.dpp("v_and_b32", A+2, P, vM+2, "row_shr:4", True)
            self.dpp("v_and_b32", A+3, P, vM+3, "row_shr:4", True)
        else:
            self.dpp("v_and_b32", A, P, vM, "row_shl:4", True)
            self.dpp("v_and_b32", A+1, P, vM+1, "row_shl:4", True)
            self.a(f"v_and_b32 v{A+2}, v{P}, v{vM+2}\nv_and_b32 v{A+3}, v{P}, v{vM+3}")
        return lambda: self.mfma(vO, A, vKV + 4*j, None if j == 0 else vO)

    def wave_allred(self, op, x, t):
        self.dpp(op, x, x, x, "quad_perm:[1,0,3,2]")
        self.dpp(op, x, x, x, "quad_perm:[2,3,0,1]")
        self.dpp(op, x, x, x, "row_half_mirror")
        self.dpp(op, x, x, x, "row_ror:8")
        self.allred_rows(op, x, t)

    def wq_addr(self):
        if self.wqw == 128:
            return f"""v_mul_u32_u24 v{vT+4}, 48, v{vT}
        v_mad_u32_u24 v{vT+4}, v{vT+3}, 6, v{vT+4}  ; r0
        v_lshlrev_b32 v{vX}, 1, v{vT+4}
        v_and_b32 v{vT+5}, 7, v{vL}
        v_lshlrev_b32 v{vT+5}, 4, v{vT+5}           ; (l&7)*16
        v_lshl_or_b32 v{vWq}, v{vT+4}, 13, v{vT+5}
        s_lshr_b32 s{sT0}, s2, 7                   ; s>>2
        s_mul_i32 s{sT1}, s{sT0}, 0x240000
        s_mul_i32 s{sT0}, s{sT0}, 576
        s_lshl_b32 s{sCnt}, s{sKvh}, 9
        s_add_u32 s{sT1}, s{sT1}, s{sCnt}
        s_and_b32 s{sCnt}, s{sS}, 3
        s_lshl_b32 s{sCnt}, s{sCnt}, 7
        s_add_u32 s{sT1}, s{sT1}, s{sCnt}
        s_mov_b32 s{SX+2}, 576
        s_mov_b32 s{SX+3}, 0x20000
        s_mov_b32 s{SWQ+2}, {287*8192+128}
        s_mov_b32 s{SWQ+3}, 0x20000"""
        return f"""v_lshrrev_b32 v{vT+6}, 5, v{vL}
        v_mul_u32_u24 v{vT+4}, 12, v{vT}
        v_mad_u32_u24 v{vT+4}, v{vT+6}, 6, v{vT+4}  ; r0
        v_lshrrev_b32 v{vT+5}, 3, v{vL}
        v_xor_b32 v{vT+5}, v{vT+5}, v{vT+1}
        v_and_b32 v{vT+5}, 1, v{vT+5}
        v_lshlrev_b32 v{vT+5}, 12, v{vT+5}
        v_lshl_or_b32 v{vX}, v{vT+4}, 1, v{vT+5}
        v_and_b32 v{vT+5}, 31, v{vL}
        v_lshlrev_b32 v{vT+5}, 4, v{vT+5}
        v_lshl_or_b32 v{vWq}, v{vT+4}, 13, v{vT+5}
        v_and_b32 v{vT+5}, 7, v{vL}
        v_lshlrev_b32 v{vT+5}, 4, v{vT+5}           ; (l&7)*16
        s_mul_i32 s{sT1}, s{sS}, {72*8192}
        s_mul_i32 s{sT0}, s{sS}, 144
        s_lshl_b32 s{sT}, s{sKvh}, 9
        s_add_u32 s{sT1}, s{sT1}, s{sT}
        s_mov_b32 s{SX+2}, 144
        s_mov_b32 s{SX+3}, 0x20000
        s_mov_b32 s{SWQ+2}, {71*8192+512}
        s_mov_b32 s{SWQ+3}, 0x20000"""
    def wgmap(self):
        if self.xmap == 0:
            return f"s_and_b32 s{sKvh}, s2, 15\ns_and_b32 s{sG}, s2, 31"
        return (f"s_bfe_u32 s{sKvh}, s2, 0x20003\ns_and_b32 s{sG}, s2, 7\ns_lshl_b32 s{sG}, s{sG}, 2\n"
                f"s_or_b32 s{sG}, s{sG}, s{sKvh}\ns_and_b32 s{sKvh}, s{sG}, 15")
    def gen(self):
        a = self.a; R = self.R
        C = (128 ** -0.5) * math.log2(math.e)
        import struct
        Cbits = struct.unpack("<I", struct.pack("<f", C))[0]
        a(f"""
        s_cmpk_ge_u32 s2, 256
        s_cbranch_scc1 L_end
        s_load_dwordx16 s[4:19], s[0:1], 0
        """)
        ld2, ld3 = "s_load_dwordx8 s[20:27], s[0:1], 64", "s_load_dwordx2 s[28:29], s[0:1], 96"
        if self.pro < 3: a(ld2)
        if self.pro < 2: a(ld3)
        if self.stamps or self.amp: a("s_memrealtime s[96:97]")
        if self.pro:
            assert self.xmap == 0 and self.wqw == 128
            a(f"""
            v_bfe_u32 v{vT+1}, v0, 4, 2                ; l>>4
            s_movk_i32 s{sT0}, 0x1cc
            v_and_or_b32 v{vK}, v0, s{sT0}, v{vT+1}
            v_lshlrev_b32 v{vK}, 6, v{vK}
            v_and_b32 v{vT+2}, 3, v0
            v_lshl_or_b32 v{vK}, v{vT+2}, 4, v{vK}
            s_and_b32 s{sKvh}, s2, 15
            s_lshr_b32 s{sS}, s2, 5
            s_lshl3_add_u32 s{sTag}, s{sKvh}, s{sS}
            s_lshl_b32 s{sTag}, s{sTag}, 18
            s_mov_b32 s{SK+3}, 0x20000
            s_lshl_b32 s{SK+2}, s{SK+3}, 1
            s_bitcmp1_b32 s2, 4
            s_waitcnt lgkmcnt(0)
            s_cselect_b64 s[6:7], s[16:17], s[6:7]
            s_add_u32 s{SK}, s6, s{sTag}
            s_addc_u32 s{SK+1}, s7, 0
            """)
        else:
            a(f"""
            v_lshrrev_b32 v{vT}, 6, v0
            v_and_b32 v{vL}, 63, v0
            v_readfirstlane_b32 s{sW}, v{vT}
            s_lshr_b32 s{sS}, s2, 5
            {self.wgmap()}
            v_lshrrev_b32 v{vT+1}, 4, v{vL}            ; l>>4
            v_and_b32 v{vT+2}, 8, v{vL}
            v_lshrrev_b32 v{vT+2}, 1, v{vT+2}
            v_or_b32 v{vT+3}, v{vT+1}, v{vT+2}          ; grp
            {self.wq_addr()}
            s_mov_b32 s{sStr}, 0x8000
            s_lshl_b32 s{sTag}, s{sKvh}, 21
            s_lshl_b32 s{sEoff}, s{sS}, 18
            s_add_u32 s{sTag}, s{sTag}, s{sEoff}
            s_lshl_b32 s{sEoff}, s{sW}, 12
            s_add_u32 s{sTag}, s{sTag}, s{sEoff}
            s_sub_u32 s{SK+2}, 0x40000, s{sEoff}
            s_mov_b32 s{SK+3}, 0x20000
            v_and_b32 v{vK}, 12, v{vL}
            v_or_b32 v{vK}, v{vK}, v{vT+1}
            v_lshlrev_b32 v{vK}, 2, v{vK}
            v_and_or_b32 v{vK}, v{vL}, 3, v{vK}
            v_lshlrev_b32 v{vK}, 4, v{vK}
            s_mov_b32 s{sT}, 0
            s_bitcmp1_b32 s{sG}, 4
            s_waitcnt lgkmcnt(0)
            s_cselect_b64 s[6:7], s[16:17], s[6:7]
            s_cselect_b64 s[4:5], s[14:15], s[4:5]
            s_cselect_b64 s[10:11], s[20:21], s[10:11]
            s_cselect_b64 s[8:9], s[18:19], s[8:9]
            s_cselect_b64 s[12:13], s[22:23], s[12:13]
            s_cselect_b32 s{sEoff}, 0x100, 0
            s_add_u32 s{SK}, s6, s{sTag}
            s_addc_u32 s{SK+1}, s7, 0
            """)
        self.stamp("karg")
        burst, rest = self.order.split("|")
        assert (burst+rest).count("W") == 6 and burst.count("X") == 1 and "X" not in rest
        S = []; nk = nw = 0
        for c in burst + rest:
            if c == "K": S.append(nk); nk += 1
            elif c == "W": S.append(-6+nw); nw += 1
        S += list(range(nk, 64))
        B = len(burst) - 1
        strset = False
        pos = 0; first = True
        for c in burst:
            if c != "K" and first:
                self.stamp("k0"); first = False
                if self.pro >= 3: a(ld2)
                if self.pro >= 2: a(ld3)
                if self.pro:
                    a(f"""
                    v_lshrrev_b32 v{vT}, 6, v0
                    v_and_b32 v{vL}, 63, v0
                    v_readfirstlane_b32 s{sW}, v{vT}
                    s_and_b32 s{sG}, s2, 31
                    v_and_b32 v{vT+2}, 8, v{vL}
                    v_lshrrev_b32 v{vT+2}, 1, v{vT+2}
                    v_or_b32 v{vT+3}, v{vT+1}, v{vT+2}          ; grp
                    {self.wq_addr()}
                    s_bitcmp1_b32 s2, 4
                    {'s_waitcnt lgkmcnt(0)' if self.pro >= 2 else ''}
                    s_cselect_b64 s[4:5], s[14:15], s[4:5]
                    s_cselect_b64 s[10:11], s[20:21], s[10:11]
                    s_cselect_b64 s[8:9], s[18:19], s[8:9]
                    s_cselect_b64 s[12:13], s[22:23], s[12:13]
                    s_cselect_b32 s{sEoff}, 0x100, 0
                    """)
                a(f"""
                s_add_u32 s{SX}, s4, s{sT0}
                s_addc_u32 s{SX+1}, s5, 0
                s_add_u32 s{SWQ}, s10, s{sT1}
                s_addc_u32 s{SWQ+1}, s11, 0
                """)
            if c == "X": self.vm("x", f"buffer_load_dwordx3 {vr(vXd,3)}, v{vX}, {srd(SX)}, 0 offen")
            else:
                if self.pro and S[pos] == 4:
                    a(f"s_mov_b32 s{sStr}, 0x8000\ns_mov_b32 s{sT}, 0"); strset = True
                    assert not first or True
                self.issue(S[pos]); pos += 1
        if self.stamps:
            a(f"v_writelane_b32 v{vStamp}, s96, 31")
            a(f"s_getreg_b32 s94, hwreg(HW_REG_XCC_ID)\nv_writelane_b32 v{vStamp}, s94, 30\ns_getreg_b32 s94, hwreg(HW_REG_HW_ID)\nv_writelane_b32 v{vStamp}, s94, 29")
        if self.pro:
            if not strset: a(f"s_mov_b32 s{sStr}, 0x8000\ns_mov_b32 s{sT}, 0")
            a(f"""s_lshl_b32 s{sT0}, s{sW}, 12
            s_add_u32 s{sTag}, s{sTag}, s{sT0}
            s_sub_u32 s{SV+2}, 0x40000, s{sT0}""")
        else: a(f"s_mov_b32 s{SV+2}, s{SK+2}")
        a(f"""
        s_add_u32 s{SV}, s8, s{sTag}
        s_addc_u32 s{SV+1}, s9, 0
        s_mov_b32 s{SV+3}, 0x20000
        s_load_dword s{sTag}, s[28:29], s{sEoff}
        s_mul_i32 s{sT0}, s{sKvh}, {256*1152}
        s_mul_i32 s{sT1}, s{sW if self.p2 else sS}, {32*1152}
        s_add_u32 s{sT0}, s{sT0}, s{sT1}
        s_add_u32 s{SWO}, s12, s{sT0}
        s_addc_u32 s{SWO+1}, s13, 0
        s_mov_b32 s{SWO+2}, {32*1152}
        s_mov_b32 s{SWO+3}, 0x20000
        """)
        if self.tlbwarm:
            self.vm("tw0", f"buffer_load_dword v{vT+14}, off, {srd(SV)}, 0")
            self.vm("tw1", f"buffer_load_dword v{vT+15}, off, {srd(SWO)}, 0")
        a(f"""
        s_mov_b32 s{SWS}, s28
        s_mov_b32 s{SWS+1}, s29
        s_mov_b32 s{SWS+2}, 0x200000
        s_mov_b32 s{SWS+3}, 0x20000
        v_lshlrev_b32 v{vLin}, 4, v{vL}
        s_mov_b32 s{sA}, 0x0f0f0f0f
        s_mov_b32 s{sA+1}, 0x0f0f0f0f
        v_mov_b32 v{vT+12}, 0xffff
        v_mov_b32 v{vT+13}, 0
        v_lshlrev_b64 v[{vT+12}:{vT+13}], v{vLin}, v[{vT+12}:{vT+13}]
        s_mov_b32 s{sSelLo}, 0x01000100
        s_mov_b32 s{sSelHi}, 0x03020302
        v_cndmask_b32_e64 v{vM}, 0, v{vT+12}, s[{sA}:{sA+1}]
        v_cndmask_b32_e64 v{vM+1}, 0, v{vT+13}, s[{sA}:{sA+1}]
        v_cndmask_b32_e64 v{vM+2}, v{vT+12}, 0, s[{sA}:{sA+1}]
        v_cndmask_b32_e64 v{vM+3}, v{vT+13}, 0, s[{sA}:{sA+1}]
        s_lshl_b32 s{sQslot}, s{sG}, 3
        s_add_u32 s{sQslot}, s{sQslot}, s{sS}
        s_lshl_b32 s{sQslot}, s{sQslot}, {8 if self.wqw == 128 else 10}
        s_add_u32 s{sQslot}, s{sQslot}, {QBOX}
        s_mov_b32 s{sPk0}, 0x07060501
        s_mov_b32 s{sPk1}, 0x07060502
        s_mov_b32 s{sPk2}, 0x07060503
        s_mov_b32 s{sCnt}, {RETRY}
        """)
        a(f"""v_mov_b32 v{vWo0}, v{vT+3}
        v_mov_b32 v{vWo1}, v{vT+5}
        v_mov_b32 v{vOW}, v{vT+1}""")
        if self.loc == 'q':
            a(f"s_getreg_b32 s{sXcc}, hwreg(HW_REG_XCC_ID, 0, 4)")
        if self.loc is not None and self.loc != 'q':
            assert self.roles
            a(f"""s_getreg_b32 s{sXcc}, hwreg(HW_REG_XCC_ID)
            s_lshl_b32 s{sXg}, s{sG}, 7
            s_add_u32 s{sXg}, s{sXg}, {XBOX}
            s_lshl_b32 s{sT0}, s{sS}, 3
            s_add_u32 s{sT0}, s{sT0}, s{sXg}
            s_waitcnt lgkmcnt(0)
            s_mul_i32 s{sTag}, s{sTag}, 1664525
            s_add_u32 s{sTag}, s{sTag}, 1013904223""")
            l = self.role(0)
            a(f"""v_mov_b32 v{vT+14}, s{sXcc}
            v_mov_b32 v{vT+15}, s{sTag}
            s_mov_b64 exec, 1""")
            if not self.diag & 32: self.vm("xst", f"buffer_store_dwordx2 v[{vT+14}:{vT+15}], off, {srd(SWS)}, s{sT0} sc1", 0)
            a(f"s_mov_b64 exec, -1\n{l}:")
        self.stamp("pre")

        NB1, NQG = self.NB1, self.NQG
        NQ = NQG + R
        tasks = {n: [] for n in range(-6, 80)}
        T = lambda n, f: tasks[n].append(f)
        kf = B - 6
        for t in range(6): T(max(B, S.index(t-6) + R) - 6, lambda t=t: self.q_mfma(t))
        nqp = max(B, S.index(-1) + R) - 6
        NB1 = max(NB1, nqp); NQG = max(NQG, NB1+1); NQ = NQG + R
        def qpart512():
            a(f"""
            v_and_b32 v{vT+2}, 15, v{vL}
            v_lshlrev_b32 v{vT+2}, 5, v{vT+2}
            v_and_b32 v{vT+3}, 1, v{vOW}
            v_lshl_or_b32 v{vT+2}, v{vT+3}, 4, v{vT+2}
            v_lshrrev_b32 v{vT+3}, 1, v{vOW}
            v_lshl_or_b32 v{vT+2}, v{vT+3}, 9, v{vT+2}
            s_lshl_b32 s{sT0}, s{sW}, 10
            v_add_u32 v{vT+2}, s{sT0}, v{vT+2}
            ds_write_b128 v{vT+2}, {vr(vD0)} offset:{L_QP}""")
        def qpart():
            a(f"""
            v_permlane32_swap_b32 v{vD0}, v{vD0+2}
            v_permlane32_swap_b32 v{vD0+1}, v{vD0+3}
            v_lshlrev_b32 v{vT+2}, 1, v{vWo1}            ; (l&7)*32
            v_and_b32 v{vT+3}, 1, v{vOW}
            v_lshl_or_b32 v{vT+2}, v{vT+3}, 4, v{vT+2}
            v_lshrrev_b32 v{vT+3}, 1, v{vOW}
            v_lshl_or_b32 v{vT+2}, v{vT+3}, 3, v{vT+2}
            s_lshl_b32 s{sT0}, s{sW}, 8
            """)
            self.dpp("v_add_f32", vD0, vD0+2, vD0, "row_ror:8")
            self.dpp("v_add_f32", vD0+1, vD0+3, vD0+1, "row_ror:8")
            a(f"""v_add_u32 v{vT+2}, s{sT0}, v{vT+2}
            s_mov_b32 exec_lo, 0x00ff00ff
            s_mov_b32 exec_hi, 0x00ff00ff
            ds_write_b64 v{vT+2}, v[{vD0}:{vD0+1}] offset:{L_QP}
            s_mov_b64 exec, -1""")
        T(kf, lambda: self.stamp("st1"))
        T(kf+1, lambda: self.stamp("st2"))
        T(nqp, qpart if self.wqw == 128 else qpart512)
        def bar1():
            a("s_waitcnt lgkmcnt(0)")
            if self.loc in (None, 'q'):
                a(f"s_mul_i32 s{sTag}, s{sTag}, 1664525")
                a(f"s_add_u32 s{sTag}, s{sTag}, 1013904223")
            if not self.diag & 2: a("s_barrier")
            self.stamp("bar1")
            l = self.role(0) if self.roles else self.only(0)
            if self.wqw == 128: a("s_mov_b64 exec, 0xffff")
            for w in range(6): a(f"ds_read_b128 {vr(vWQB+4*w)}, v{vLin} offset:{L_QP+(256 if self.wqw == 128 else 1024)*w}")
            for k, (x, y) in enumerate([(0,1),(2,3),(4,5),(0,2),(0,4)]):
                if k < 3: a(f"s_waitcnt lgkmcnt({4-2*k})")
                for h in (0, 2):
                    a(f"v_pk_add_f32 v[{vWQB+4*x+h}:{vWQB+4*x+h+1}], v[{vWQB+4*x+h}:{vWQB+4*x+h+1}], v[{vWQB+4*y+h}:{vWQB+4*y+h+1}]")
            self.pack(vWQB)
            if self.loc == 'q': a(f"v_xor_b32 v{vWQB+3}, s{sXcc}, v{vWQB+3}")
            if self.loc not in (None, 'q'):
                a(f"s_mov_b64 exec, -1\n{l}:")
                return
            if self.roles:
                self.vm("qpub", f"buffer_store_dwordx4 {vr(vWQB)}, v{vLin}, {srd(SWS)}, s{sQslot} offen {self.qst}", 0)
                a(f"s_mov_b64 exec, -1\n{l}:")
                return
            a(f"{l}:")
            self.vm_masked(0, "0xffff" if self.wqw == 128 else "-1", [("qpub", f"buffer_store_dwordx4 {vr(vWQB)}, v{vLin}, {srd(SWS)}, s{sQslot} offen {self.qst}")])
        T(NB1, bar1)
        if self.loc not in (None, 'q'):
            NXL = NB1 + self.loc
            def xld():
                l = self.role(0)
                a(f"v_lshlrev_b32 v{vWQB+6}, 3, v{vL}\ns_mov_b64 exec, 0xff")
                if not self.diag & 64: self.vm("xld", f"buffer_load_dwordx2 v[{vWQB+4}:{vWQB+5}], v{vWQB+6}, {srd(SWS)}, s{sXg} offen sc1", 0)
                a(f"s_mov_b64 exec, -1\n{l}:")
            T(NXL, xld)
            def xchk():
                l = self.role(0)
                if not self.diag & 64: self.wait("xld", 0)
                a(f"""s_mov_b64 exec, 0xff
                v_cmp_eq_u32 vcc, s{sXcc}, v{vWQB+4}
                v_cmp_eq_u32_e64 s[{sCm}:{sCm+1}], s{sTag}, v{vWQB+5}
                s_and_b64 vcc, vcc, s[{sCm}:{sCm+1}]
                s_cmp_eq_u64 vcc, exec
                s_cselect_b32 s{sLoc}, 1, {1 if self.diag & 96 else 0}
                s_mov_b64 vcc, -1
                v_mov_b32 v{vWQB+4}, s{sLoc}
                s_mov_b64 exec, {'0xffff' if self.wqw == 128 else '-1'}""")
                self.store_fl("qpub", f"buffer_store_dwordx4 {vr(vWQB)}, v{vLin}, {srd(SWS)}, s{sQslot} offen", 0)
                a(f"""ds_write_b32 v{vLin}, v{vWQB+4} offset:{L_FL}
                s_mov_b64 exec, -1
                s_waitcnt lgkmcnt(0)
                {l}:""")
            T(NXL+R, xchk)
            assert NXL + R < NQG
        def setup1():
            a(f"""
            s_mov_b32 s{sUp0}, 0x0c04000c
            s_mov_b32 s{sUp1}, 0x04020100
            s_mov_b32 s{SOUT}, s24
            s_mov_b32 s{SOUT+1}, s25
            s_mov_b32 s{SOUT+2}, 2304
            s_mov_b32 s{SOUT+3}, 0x20000
            s_mov_b32 s{sC}, {Cbits:#x}
            s_lshl_b32 s{sQg}, s{sG}, 11
            s_add_u32 s{sMLg}, s{sQg}, {MLBOX}
            s_lshl_b32 s{sQg}, s{sG}, {11 if self.wqw == 128 else 13}
            s_add_u32 s{sQg}, s{sQg}, {QBOX}
            s_add_u32 s{sQg2}, s{sQg}, 4096
            s_lshl_b32 s{sT0}, s{sS}, 3
            s_add_u32 s{sT0}, s{sT0}, s{sW}
            s_lshl_b32 s{sT0}, s{sT0}, 4
            s_add_u32 s{sMLs}, s{sMLg}, s{sT0}
            s_lshl_b32 s{sT0}, s{sG}, 13
            s_add_u32 s{sT0}, s{sT0}, {OBOX}
            s_lshl_b32 s{sT1}, s{sW if self.p2 else sS}, 10
            s_add_u32 s{sOg}, s{sT0}, s{sT1}
            s_lshl_b32 s{sT1}, s{sW}, 10
            s_add_u32 s{sOs}, s{sT0}, s{sT1}
            s_lshl_b32 s{sT1}, s{sS}, 7
            s_add_u32 s{sOs}, s{sOs}, s{sT1}
            s_lshl_b32 s{sCi}, s{sS}, 4
            s_add_u32 s{sCi}, s{sCi}, s{sKvh}
            s_lshr_b32 s{sT0}, s{sG}, 4
            s_mul_i32 s{sT0}, s{sT0}, 72
            s_add_u32 s{sT1}, s{sT0}, s{sCi}
            s_lshl_b32 s{sOutO}, s{sT1}, 4
            s_lshl_b32 s{sPg}, s{sT1}, {10 if self.p2 else 12}
            s_add_u32 s{sPg}, s{sPg}, {PBOX}
            """)
            if self.p2:
                a(f"""s_lshl_b32 s{sT1}, s{sS}, 3
                s_add_u32 s{sT0}, s{sT0}, s{sT1}
                s_lshl_b32 s{sT0}, s{sT0}, 10
                s_lshl_b32 s{sT1}, s{sKvh}, 5
                s_add_u32 s{sT0}, s{sT0}, s{sT1}
                s_add_u32 s{sPs}, s{sT0}, {PBOX}
                s_cmp_ge_u32 s{sCi}, 8
                s_cselect_b32 s{sExC+1}, -1, 0
                s_cmp_lt_u32 s{sCi}, 64
                s_cselect_b32 s{sExC}, -1, 0
                """)
            else:
                a(f"""s_lshl_b32 s{sT0}, s{sT0}, 12
                s_lshl_b32 s{sT1}, s{sW}, 15
                s_add_u32 s{sT0}, s{sT0}, s{sT1}
                s_lshl_b32 s{sT1}, s{sKvh}, 3
                s_add_u32 s{sT1}, s{sT1}, s{sS}
                s_lshl_b32 s{sT1}, s{sT1}, 5
                s_add_u32 s{sT0}, s{sT0}, s{sT1}
                s_add_u32 s{sPs}, s{sT0}, {PBOX}
                """)
            a(f"""
            s_mov_b32 s{sExO}, 0x01010101
            s_mov_b32 s{sExO+1}, 0x01010101
            s_mov_b32 s{sExP}, 0x00ff00ff
            s_mov_b32 s{sT1}, 0x100000
            s_cmp_eq_u32 s{sW}, {'s%d' % sS if self.p2 else 7}
            s_cselect_b32 s{sExP+1}, s{sExP}, 0
            s_cselect_b32 s{sT1}, 0x80, s{sT1}
            s_mov_b32 s{sExOut}, 0x00030003
            s_mov_b32 s{sExOut+1}, 0x00030003
            s_lshl_b32 s{sT0}, s{sS}, 3
            s_lshl_b64 s[{sExF}:{sExF+1}], 0xff, s{sT0}
            """)
            a(f"""
            v_lshl_or_b32 v{vOG}, v{vWo1}, 3, 0              ; (l&7)*128
            v_lshl_or_b32 v{vOG}, v{vWo0}, 4, v{vOG}          ; + slot*16
            v_and_b32 v{vT}, 1, v{vOW}                       ; (l>>4)&1
            v_lshrrev_b32 v{vT+1}, 1, v{vOW}                 ; l>>5
            """)
            if self.p2:
                a(f"""
                s_cmp_ge_u32 s{sW}, s{sS}
                s_cselect_b32 s{sT0}, 1, 0
                s_add_u32 s{sT0}, s{sT0}, s{sW}
                s_lshl_b32 s{sT0}, s{sT0}, 8
                s_add_u32 s{sT0}, s{sT0}, {L_PZ + 7*256}
                v_lshlrev_b32 v{vPW}, 1, v{vWo1}                 ; (l&7)*32
                v_lshl_or_b32 v{vPW}, v{vT}, 4, v{vPW}
                v_lshlrev_b32 v{vT+2}, 8, v{vT+1}
                v_sub_u32 v{vPW}, v{vPW}, v{vT+2}
                v_add_u32 v{vPW}, s{sT0}, v{vPW}
                v_and_b32 v{vPR}, 15, v{vL}
                v_lshlrev_b32 v{vPR}, 4, v{vPR}
                v_xor_b32 v{vT+2}, 1, v{vT}
                v_lshl_or_b32 v{vPR}, v{vT+2}, 11, v{vPR}
                s_lshl_b32 s{sT0}, s{sS}, 8
                s_add_u32 s{sT0}, s{sT0}, {L_PZ}
                v_add_u32 v{vPR}, s{sT0}, v{vPR}
                v_and_b32 v{vPP}, 14, v{vL}
                v_lshlrev_b32 v{vPP}, 9, v{vPP}                  ; (gc>>1)*1024
                v_and_b32 v{vT+2}, 1, v{vL}
                v_lshl_or_b32 v{vPP}, v{vT+2}, 4, v{vPP}
                v_mul_u32_u24 v{vT+2}, {8*1024+512}, v{vT}
                v_add_u32 v{vPP}, v{vPP}, v{vT+2}
                s_cmp_lt_u32 s{sW}, 6
                s_cselect_b64 exec, -1, 0
                s_lshl_b32 s{sT0}, s{sW}, 10
                v_add_u32 v{vT+2}, s{sT0}, v{vLin}
                v_mov_b32 v{vT+4}, 0
                v_mov_b32 v{vT+5}, 0
                v_mov_b32 v{vT+6}, 0
                v_mov_b32 v{vT+7}, 0
                ds_write_b128 v{vT+2}, {vr(vT+4)} offset:{L_PZ}
                s_mov_b64 exec, -1
                """)
            else:
                a(f"""v_lshlrev_b32 v{vPP}, 8, v{vWo1}                 ; (l&7)*4096
                v_lshl_or_b32 v{vPP}, v{vT}, 4, v{vPP}
                v_lshl_or_b32 v{vPP}, v{vT+1}, 15, v{vPP}""")
            a(f"""
            v_and_b32 v{vOut}, 1, v{vL}
            v_lshl_add_u32 v{vOut}, v{vOut}, 2, v{vOW}
            v_lshlrev_b32 v{vOut}, 1, v{vOut}
            v_lshrrev_b32 v{vFW}, 2, v{vWo1}                 ; (l&7)*4
            s_lshr_b32 s{sT0}, s{sW}, 2
            s_lshl_b32 s{sT0}, s{sT0}, 5
            v_add_u32 v{vFR}, s{sT0}, v{vFW}
            v_and_b32 v{vOP}, 0x38, v{vL}
            v_lshlrev_b32 v{vOP}, 1, v{vOP}                  ; (l>>3)*16
            v_mul_u32_u24 v{vOR}, {L_OSTR//16}, v{vWo1}       ; (l&7)*1040
            v_add_u32 v{vOR}, v{vOR}, v{vOP}
            s_lshl_b32 s{sT0}, s{sW}, 7
            v_add_u32 v{vOR}, s{sT0}, v{vOR}
            v_and_b32 v{vT+2}, 15, v{vL}
            v_lshlrev_b32 v{vOW}, 5, v{vT+2}
            v_lshl_or_b32 v{vOW}, v{vT}, 4, v{vOW}
            v_lshl_or_b32 v{vOW}, v{vT+1}, 9, v{vOW}
            s_mul_i32 s{sT0}, s{sW}, {L_OSTR}
            v_add_u32 v{vOW}, s{sT0}, v{vOW}
            v_mul_u32_u24 v{vWo0}, {4*1152}, v{vWo0}
            v_add_u32 v{vWo0}, v{vWo0}, v{vWo1}
            """)
            if self.p2:
                a(f"""s_cmp_lt_u32 s{sW}, s{sS}
                s_addc_u32 s{sT0}, s{sS}, 0
                s_lshl_b32 s{sT0}, s{sT0}, 7""")
            else: a(f"s_lshl_b32 s{sT0}, s{sW}, 7")
            a(f"""
            v_add_u32 v{vWo0}, s{sT0}, v{vWo0}
            v_add_u32 v{vWo1}, s{sT1}, v{vWo0}
            v_and_b32 v{vX}, 0xff, v{vK}
            v_lshrrev_b32 v{vT}, 1, v{vK}
            v_and_b32 v{vT}, 0x100, v{vT}
            v_or_b32 v{vX}, v{vX}, v{vT}
            """)
        T(NB1+1, setup1)
        def touch():
            for k, c in enumerate(self.touch):
                b = {'v': SV, 'w': SWO, 'o': SOUT}[c]
                a(f"s_load_dword s{4+k}, s[{b}:{b+1}], 0")
        if self.touch: T(NB1+self.ntouch, touch)
        assert NQG >= NB1+1
        nqg = 2 if self.wqw == 128 else 8
        qb = vWQB if nqg == 2 else vKV + 96
        assert nqg == 2 or NQ < 24
        qg = [f"buffer_load_dwordx4 {vr(qb+4*k)}, v{vLin}, {srd(SWS)}, s{sQg if k < 4 else sQg2} offen offset:{1024*(k%4)} sc1" for k in range(nqg)]
        def t_qg():
            if self.roles:
                l = self.role(1)
                for k in range(nqg): self.vm(f"qg{k}", qg[k], 1)
                a(f"{l}:")
                return
            self.vm_masked(1, "-1", [(f"qg{k}", qg[k]) for k in range(nqg)])
        T(NQG, t_qg)
        def t_q():
            if not self.roles: self.wait(f"qg{nqg-1}")
            l = self.only(1)
            if self.roles: self.wait(f"qg{nqg-1}", 1)
            self.stamp("qchk")
            self.check_retry([qb+4*k+3 for k in range(nqg)], lambda: a("\n".join(qg)), die=(vT+4 if self.loc == 'q' else None))
            self.stamp("qok")
            if self.loc == 'q':
                a(f"""v_cmp_ne_u32 vcc, s{sXcc}, v{vT+4}
                v_cmp_ne_u32_e64 s[{sCm}:{sCm+1}], s{sXcc}, v{vT+5}
                s_or_b64 vcc, vcc, s[{sCm}:{sCm+1}]
                s_cselect_b32 s{sLoc}, 0, 1
                v_mov_b32 v{vT+4}, s{sLoc}
                ds_write_b32 v{vLin}, v{vT+4} offset:{L_FL}""")
            self.unpack([qb+4*k for k in range(nqg)])
            for (x, y) in ([(0,1)] if nqg == 2 else [(0,1),(2,3),(4,5),(6,7),(0,2),(4,6),(0,4)]):
                for h in (0, 2):
                    a(f"v_pk_add_f32 v[{qb+4*x+h}:{qb+4*x+h+1}], v[{qb+4*x+h}:{qb+4*x+h+1}], v[{qb+4*y+h}:{qb+4*y+h+1}]")
            a(f"""
            v_lshlrev_b32 v{vT+2}, 3, v{vL}
            v_cvt_pk_bf16_f32 v{vT}, v{qb}, v{qb+1}
            v_cvt_pk_bf16_f32 v{vT+1}, v{qb+2}, v{qb+3}
            ds_write_b64 v{vT+2}, v[{vT}:{vT+1}] offset:{L_QB}
            s_waitcnt lgkmcnt(0)
            {l}:
            {'' if self.diag & 8 else 's_barrier'}""")
            self.stamp("bar2")
            if self.loc is not None: a(f"v_mov_b32 v{vT+1}, 0\nds_read_b32 v{vT}, v{vT+1} offset:{L_FL}")
            a(f"""ds_read_b128 {vr(vBB)}, v{vX} offset:{L_QB}
            s_waitcnt lgkmcnt(0)""")
            if self.loc is not None:
                a(f"v_readfirstlane_b32 s{sLoc}, v{vT}")
                if self.stamps: a(f"v_writelane_b32 v{vStamp}, s{sLoc}, 28")
            for i in range(4): a(f"v_cndmask_b32_e64 v{vBA+i}, 0, v{vBB+i}, s[{sA}:{sA+1}]")
            for i in range(4): a(f"v_cndmask_b32_e64 v{vBB+i}, v{vBB+i}, 0, s[{sA}:{sA+1}]")
        T(NQ, t_q)
        u = 0; n = NQ
        while u < 16:
            avail = (n - R + 1) // 2
            us = list(range(u, min(16, avail, u + (self.qk_per_step if n > NQ else 1))))
            if us:
                def f(us=us):
                    if self.diag & 4: return
                    for x in us: self.qk_mfma(x)
                    self.qk_fin(us)
                T(n, f); u = us[-1] + 1
            n += 1
        nsm = n - 1
        assert nsm == 31 + R, nsm
        T(nsm, self.softmax_max)
        T(nsm, lambda: self.stamp("smax"))
        T(nsm, lambda: self.softmax_p([0,1,2,3]))
        T(nsm+1, lambda: self.softmax_p([4,5,6,7,8,9]))
        T(nsm+2, lambda: self.softmax_p([10,11,12,13,14,15]))
        T(nsm+2, self.ml_publish)
        j = 0; n = nsm + 3
        pvlast = None
        while j < 32:
            avail = n - R - 32 + 1
            js = list(range(j, min(32, avail, j + self.pv_per_step)))
            if js:
                def f(js=js):
                    if self.diag & 16: return
                    pend = None
                    for x in js:
                        m = self.pv(x)
                        if pend: pend()
                        pend = m
                    pend()
                T(n, f); j = js[-1] + 1
            n += 1
        nlast = n - 1
        assert nlast == 63 + R
        NML = self.NML
        mg = [f"buffer_load_dwordx3 {vr(vWQB+4*k,3)}, v{vLin}, {srd(SWS)}, s{sMLg} offen offset:{1024*k} sc1" for k in range(2)]
        def mlg():
            if self.roles:
                l = self.role(2)
                for k in range(2): self.vm(("mlg0","mlg")[k], mg[k], 2)
                a(f"{l}:")
                return
            self.vm_masked(2, "-1", [("mlg0", mg[0]), ("mlg", mg[1])])
        def t_ml():
            mlg()
        T(NML, t_ml)
        def t_mlchk():
            if not self.roles: self.wait("mlg")
            l = self.only(2)
            if self.roles: self.wait("mlg", 2)
            self.stamp("mlchk")
            self.check_retry([vWQB+2, vWQB+6], lambda: a("\n".join(mg)))
            m0, l0, m1, l1 = vWQB, vWQB+1, vWQB+4, vWQB+5
            x0, x1 = vWQB+8, vWQB+9
            a(f"v_mov_b32 v{x0}, v{m0}\nv_mov_b32 v{x1}, v{m1}")
            self.wave_allred2("v_max_f32", x0, x1)
            a(f"""v_sub_f32 v{m0}, v{m0}, v{x0}
            v_sub_f32 v{m1}, v{m1}, v{x1}
            v_exp_f32 v{m0}, v{m0}
            v_exp_f32 v{m1}, v{m1}
            s_nop 0
            v_mul_f32 v{x0}, v{m0}, v{l0}
            v_mul_f32 v{x1}, v{m1}, v{l1}""")
            self.wave_allred2("v_add_f32", x0, x1)
            a(f"""v_rcp_f32 v{x0}, v{x0}
            v_rcp_f32 v{x1}, v{x1}
            s_nop 0
            v_mul_f32 v{m0}, v{m0}, v{x0}
            v_mul_f32 v{m1}, v{m1}, v{x1}
            s_mov_b64 exec, s[{sExF}:{sExF+1}]
            ds_write_b32 v{vFW}, v{m0} offset:{L_F}
            ds_write_b32 v{vFW}, v{m1} offset:{L_F+32}
            s_mov_b64 exec, -1
            {l}:""")
        T(NML+R, t_mlchk)
        assert NML + R < nlast and NML > nsm + 3

        seq = [self.item(k) for k in S]
        wos = self.wosched if self.wosched is not None else {64+k: 1 for k in range(self.wo_early)}
        upto = {n: n for n in range(kf, nlast+1)}
        for nb, B in ((NB1, self.boost1), (NQ, self.boost2), (NML+R, self.boost3)):
            for k in range(B+1): upto[nb+k] = max(upto[nb+k], nb+B)
        if self.ramp:
            n0, rate = self.ramp
            wos = {}; prev = 0
            for n in range(n0, nlast+1):
                t = n0 - 1 + int((n - n0 + 1)*rate)
                upto[n] = t
                k = min(8, max(0, t - 63)); wos[n] = k - prev; prev = k
        nxt, nwo = kf, 64
        for n in range(kf, nlast+1):
            if n - R < 64: self.wait(seq[n + 6 - R])
            while nxt <= min(63, upto[n]): self.issue(S[nxt+6]); nxt += 1
            if n == self.wobar: a("s_barrier")
            for k in range(wos.get(n, 0)): self.issue(nwo); nwo += 1
            if n == nlast: self.stamp("vlast")
            if n >= 60: self.stamp(f"s{n}")
            for f in tasks[n]: f()
        for n in range(nwo, 72): self.issue(n)
        if self.diag & 128:
            for k in (0, 1, 2, 3, 7):
                self.wait(f"it{64+k}"); self.stamp(f"w{k}")
        a(f"""ds_write_b128 v{vOW}, {vr(vO)} offset:{L_OP}
        s_waitcnt lgkmcnt(0)
        s_barrier""")
        self.stamp("bar3")
        a(f"""ds_read_b128 {vr(vT)}, v{vOR} offset:{L_OP}
        ds_read_b32 v{vT+4}, v{vFR} offset:{L_F}
        s_waitcnt lgkmcnt(0)""")
        for r in range(4): a(f"v_mul_f32 v{vT+r}, v{vT+r}, v{vT+4}")
        for ctl in ("quad_perm:[1,0,3,2]", "quad_perm:[2,3,0,1]", "row_half_mirror"):
            for r in range(4): self.dpp("v_add_f32", vT+r, vT+r, vT+r, ctl)
        self.pack(vT)
        if self.diag & 1:
            self.stamp("opre"); a("s_waitcnt vmcnt(0)"); self.stamp("woarr")
        a(f"s_mov_b64 exec, s[{sExO}:{sExO+1}]")
        self.store_fl("opub", f"buffer_store_dwordx4 {vr(vT)}, v{vOP}, {srd(SWS)}, s{sOs} offen", None, self.ost)
        a("s_mov_b64 exec, -1")
        if self.diag & 1:
            a("s_waitcnt vmcnt(0)"); self.stamp("stack")
        if self.ogwait: self.wait("it71")
        g0 = vT + 8
        og = f"buffer_load_dwordx4 {vr(g0)}, v{vOG}, {srd(SWS)}, s{sOg} offen {self.old}"
        self.vm("og", og)
        if self.p2:
            for r in range(4): a(f"v_mov_b32 v{vKV+64+r}, 0")
        self.stamp("opub")
        if self.diag & 256:
            for nm in ("it66", "it67", "it71", "opub"):
                self.wait(nm); self.stamp("a_"+nm)
        a("s_waitcnt vmcnt(0)")
        self.stamp("og1")
        self.check_retry([g0+3], lambda: a(og))
        self.stamp("ogok")
        self.unpack([g0])
        for ctl in ("quad_perm:[1,0,3,2]", "quad_perm:[2,3,0,1]", "row_half_mirror"):
            for r in range(4): self.dpp("v_add_f32", g0+r, g0+r, g0+r, ctl)
        for r in range(4): a(f"v_cvt_pk_bf16_f32 v{g0+r}, v{g0+r}, v{g0+r}")
        pend = None
        for i in range(4):
            A = vA0 if i % 2 == 0 else vA1
            self.build_A(A, g0+i)
            if pend: pend()
            def m(i=i, A=A):
                self.mfma(vD0, A, vKV + 4*i, None if i == 0 else vD0)
                self.mfma(vD1, A, vKV + 16 + 4*i, None if i == 0 else vD1)
            pend = m
        pend()
        for r in range(4): a(f"v_permlane32_swap_b32 v{vD0+r}, v{vD1+r}")
        for r in range(4): self.dpp("v_add_f32", vD0+r, vD1+r, vD0+r, "row_ror:8")
        if self.p2:
            a(f"""s_mov_b64 exec, s[{sExP}:{sExP+1}]
            ds_write_b128 v{vPW}, {vr(vD0)}
            s_mov_b64 exec, -1
            s_waitcnt lgkmcnt(0)
            s_barrier""")
            self.stamp("bar4")
            l = self.only(self.redw)
            r0 = vKV + 32
            for k in range(8): a(f"ds_read_b128 {vr(r0+4*k)}, v{vPR} offset:{256*k}")
            for k in range(1, 8):
                a(f"s_waitcnt lgkmcnt({7-k})")
                for h in (0, 2):
                    a(f"v_pk_add_f32 v[{r0+h}:{r0+h+1}], v[{r0+h}:{r0+h+1}], v[{r0+4*k+h}:{r0+4*k+h+1}]")
            self.pack(r0)
            a("s_mov_b32 exec_hi, 0")
            self.vm("ppub", f"buffer_store_dwordx4 {vr(r0)}, v{vPP}, {srd(SWS)}, s{sPs} offen {self.pst}")
            a(f"s_mov_b64 exec, -1\n{l}:")
        else:
            self.pack(vD0)
            a(f"s_mov_b64 exec, s[{sExP}:{sExP+1}]")
            self.vm("ppub", f"buffer_store_dwordx4 {vr(vD0)}, v{vPP}, {srd(SWS)}, s{sPs} offen sc1")
            a("s_mov_b64 exec, -1")
        self.stamp("ppub")
        a(f"""s_cmp_lg_u32 s{sW}, {self.consw}
        s_cbranch_scc1 L_fin
        s_cmp_ge_u32 s{sCi}, 72
        s_cbranch_scc1 L_fin""")
        p0 = vKV + 64
        npg = 1 if self.p2 else 4
        def pg():
            for t in range(npg): a(f"buffer_load_dwordx4 {vr(p0+4*t)}, v{vLin}, {srd(SWS)}, s{sPg} offen offset:{t*1024} {self.pld}")
        if self.p2: a(f"s_mov_b64 exec, s[{sExC}:{sExC+1}]")
        pg()
        a("s_waitcnt vmcnt(0)")
        self.stamp("pg1")
        self.check_retry([p0+3+4*t for t in range(npg)], pg, base=(f"s[{sExC}:{sExC+1}]" if self.p2 else "-1"))
        if self.p2: a("s_mov_b64 exec, -1")
        self.stamp("pgok")
        self.unpack([p0+4*t for t in range(npg)])
        for (x, y) in ([] if self.p2 else [(0,1),(2,3),(0,2)]):
            for h in (0, 2):
                a(f"v_pk_add_f32 v[{p0+4*x+h}:{p0+4*x+h+1}], v[{p0+4*x+h}:{p0+4*x+h+1}], v[{p0+4*y+h}:{p0+4*y+h+1}]")
        a(f"""v_permlane32_swap_b32 v{p0}, v{p0+2}
        v_permlane32_swap_b32 v{p0+1}, v{p0+3}
        v_add_f32 v{p0}, v{p0}, v{p0+2}
        v_add_f32 v{p0+1}, v{p0+1}, v{p0+3}
        v_permlane16_swap_b32 v{p0}, v{p0+1}
        v_add_f32 v{p0}, v{p0}, v{p0+1}""")
        for ctl in ("row_ror:8", "row_ror:4", "quad_perm:[2,3,0,1]"):
            self.dpp("v_add_f32", p0, p0, p0, ctl)
        a(f"""v_cvt_pk_bf16_f32 v{p0}, v{p0}, v{p0}
        s_mov_b64 exec, s[{sExOut}:{sExOut+1}]
        buffer_store_short v{p0}, v{vOut}, {srd(SOUT)}, s{sOutO} offen {self.ofl}
        s_cmp_lg_u32 s{sCi}, 0
        s_cbranch_scc1 L_fin2
        v_mov_b32 v{vT}, s{sTag}
        s_mov_b64 exec, 1
        buffer_store_dword v{vT}, off, {srd(SWS)}, s{sEoff} sc1
        L_fin2:
        s_mov_b64 exec, -1""")
        a("L_fin:")
        if self.amp:
            self.stamp("end")
            a(f"""s_cmp_lg_u32 s2, {self.amp[2] if len(self.amp) > 2 else 0}
            s_cbranch_scc1 L_end
            s_cmp_lg_u32 s{sW}, {self.amp[3] if len(self.amp) > 3 else 0}
            s_cbranch_scc1 L_end
            s_memrealtime s[4:5]
            s_waitcnt lgkmcnt(0)
            s_sub_u32 s6, s16, s96
            s_min_u32 s6, s6, 8000
            s_mul_i32 s6, s6, {int(self.amp[1]*16)}
            s_lshr_b32 s6, s6, 4
            s_mov_b32 s7, 2000000
            L_spin:
            s_memrealtime s[8:9]
            s_waitcnt lgkmcnt(0)
            s_sub_u32 s8, s8, s4
            s_cmp_ge_u32 s8, s6
            s_cbranch_scc1 L_end
            s_sub_u32 s7, s7, 1
            s_cbranch_scc0 L_spin
            s_branch L_end""")
        if self.stamps:
            a("s_waitcnt vmcnt(0)")
            self.stamp("end")
            a(f"""s_lshl_b32 s{sT0}, s2, 3
            s_add_u32 s{sT0}, s{sT0}, s{sW}
            s_lshl_b32 s{sT0}, s{sT0}, 7
            s_add_u32 s{sT0}, s{sT0}, {STAMP}
            v_lshlrev_b32 v{vT}, 2, v{vL}
            s_mov_b32 exec_hi, 0
            buffer_store_dword v{vStamp}, v{vT}, {srd(SWS)}, s{sT0} offen
            s_waitcnt vmcnt(0)""")
        a("L_end:\ns_endpgm")
        lines, nn = pad(self.L)
        self.nops = nn
        return "\n".join(lines) + "\n"

    def wave_allred2(self, op, x, y):
        for ctl in ("quad_perm:[1,0,3,2]", "quad_perm:[2,3,0,1]", "row_half_mirror", "row_ror:8"):
            self.dpp(op, x, x, x, ctl); self.dpp(op, y, y, y, ctl)
        t, u = vT, vT+1
        for sw in ("v_permlane16_swap_b32", "v_permlane32_swap_b32"):
            self.a(f"""v_mov_b32 v{t}, v{x}
            v_mov_b32 v{u}, v{y}
            {sw} v{x}, v{t}
            {sw} v{y}, v{u}
            {op} v{x}, v{x}, v{t}
            {op} v{y}, v{y}, v{u}""")

def header():
    ref = open("concat_heads__gqa_block_cached__gqa_block_cached__decode.s.ref").read().split("\n")
    out = []
    for l in ref:
        if l.startswith("; @launch"): break
        out.append(l)
    return "\n".join(out) + "\n"

def gen(**kw):
    g = G(**kw)
    body = g.gen()
    txt = wrap(body, 256, 512, LDS_BYTES, vgpr=NVGPR, header=header())
    return txt, g

if __name__ == "__main__":
    kw = eval(sys.argv[2]) if len(sys.argv) > 2 else {}
    txt, g = gen(**kw)
    open(sys.argv[1], "w").write(txt)
    print("nops", g.nops, "lines", txt.count("\n"), g.stamp_names)
```

```python
import math, sys
from asmlib import wrap
from hz import pad

QBOX, MLBOX, OBOX, PBOX, STAMP = 0x180000, 0x20000, 0x30000, 0x70000, 0x100000
XBOX = 0x1c0000
L_QP, L_QB, L_F, L_FL, L_OP, L_OSTR = 0, 8192, 8704, 7680, 9216, 1040
L_PZ = 1536
LDS_BYTES = L_OP + 8*L_OSTR
RETRY = 1 << 16

sW, sS, sKvh, sG, sT, sStr, sCnt = 30, 31, 33, 34, 35, 68, 69
SK, SV, SWQ, SX, SWO, SWS, SDBG, SOUT = 36, 40, 44, 48, 52, 56, 60, 64
sA = 70
sSelLo, sSelHi, sC = 72, 73, 74
sQslot, sQg, sMLs, sMLg, sOs, sOg, sPs, sPg, sOutO = 75, 76, 77, 78, 79, 80, 81, 82, 83
sExO, sExP, sExOut, sExF, sTmp2 = 84, 86, 88, 90, 92
sT0, sT1 = 3, 32
sTag, sEoff, sCi = 60, 61, 101
sPk0, sPk1, sPk2, sUp0, sUp1 = 62, 63, 98, 99, 100
sWo = 18
sPg2 = 75
sQg2, sLoc, sXcc, sXg = 23, 22, 21, 20
sExC = 24
vPW, vPR = 4, 13
sCm = 26
sBU, sTU = 14, 15
sPgV, sPgS, sPgL, sPgT = 10, 11, 12, 13
PGBOX, L_CTL, CW = 0x1d0000, 8832, 3
vCtl, vSamp, vVal, vCA = 244, 246, 247, 248
sStamp0 = 94

vTid, vL, vK, vLin, vWq, vX = 0, 1, 2, 3, 4, 5
vM = 6
vXd = 10
vOW, vOR, vFR, vOP, vOG, vWo0, vWo1, vPP, vOut, vFW = 14, 15, 16, 17, 18, 19, 20, 21, 22, 23
vBA, vBB = 24, 28
vA0, vA1 = 32, 36
vO = 40
vD0, vD1 = 44, 48
vS = 52
vMc, vLs, vTg, vMx = 68, 69, 70, 71
vT = 72
vWQB = 88
vKV = 112
vStamp = 240
NVGPR = 244

def srd(n): return f"s[{n}:{n+3}]"
def vr(n, k=4): return f"v[{n}:{n+k-1}]"

class G:
    def __init__(self, R=3, NB1=2, NQG=8, NML=52, kfl="nt", vfl="nt", wqfl="nt", wofl="nt", stamps=False,
                 qk_per_step=2, pv_per_step=3, wo_early=3, consw=0, kfront=1, tlbwarm=False, amp=None, ost='sc1', old='sc1', qst='sc1', mst='sc1', xmap=0, qrot=0, wqw=128, roles=False, boost1=0, boost2=0, boost3=0, wosched=None, diag=0, ramp=None, ogwait=False, loc=None, touch=None, ntouch=1, p2=False, redw=0, order='KXWWWWWW|', wobar=None, pst='sc1', pld='sc1', ofl='', efl='sc1', pro=0, wolate=0, ctl=None, xb=None, xt=None, xidx='x', fb=None, pga=None, preA=False, rdm=False, pgn=None, pstr=32, prep=0, numa=0, mlsc=False, oclean=0, mlclean=False, xtag=False, pubat=None):
        self.__dict__.update(locals()); del self.__dict__['self']
        self.L = []
        self.ops = []; self.done = -1
        self.nlab = 0; self.nstamp = 0; self.stamp_names = []

    def a(self, s):
        for l in s.split("\n"):
            l = l.split(';')[0].strip()
            if l: self.L.append(l if l.endswith(":") else "    " + l)
    def lab(self, p="L"):
        self.nlab += 1; return f"{p}_{self.nlab}"
    def vm(self, name, text, cond=None):
        self.a(text); self.ops.append((name, cond))
    def wait(self, name, cond=None, extra=""):
        idx = max(i for i, o in enumerate(self.ops) if o[0] == name)
        if idx <= self.done:
            if extra: self.a(f"s_waitcnt {extra}")
            return
        n = sum(1 for o in self.ops[idx+1:] if o[1] is None or o[1] == cond)
        assert n <= 63
        if cond is None:
            x = [o for o in self.ops[idx+1:] if o[1] is not None]
            if x and self.fb:
                self.ladder(n, x, extra); self.done = idx
                return
            assert len(set(o[1] for o in x)) <= 1
            if x:
                l = self.lab("RW")
                self.a(f"s_waitcnt vmcnt({n+len(x)})\ns_cbranch_vccnz {l}\ns_waitcnt vmcnt({n}) {extra}\n{l}:")
                self.done = idx
                return
        self.a(f"s_waitcnt vmcnt({n}) {extra}")
        if cond is None: self.done = idx
        else: self.ops = [o if (i > idx or o[1] != cond) else (o[0], 'gone') for i, o in enumerate(self.ops)]; self.purge()
    def ladder(self, n, x, extra=""):
        done = self.lab("LD")
        for r in sorted(set(o[1] for o in x)):
            nx = self.lab("LN")
            self.a(f"s_cmp_lg_u32 s{sW}, {r}\ns_cbranch_scc1 {nx}\ns_waitcnt vmcnt({n + sum(1 for o in x if o[1] == r)}) {extra}\ns_branch {done}\n{nx}:")
        self.a(f"s_waitcnt vmcnt({n}) {extra}\n{done}:")
    def cwait(self, name, sreg, m, skip_if_gt):
        idx = max(i for i, o in enumerate(self.ops) if o[0] == name)
        if idx <= self.done: return
        n = sum(1 for o in self.ops[idx+1:] if o[1] is None)
        x = [o for o in self.ops[idx+1:] if o[1] is not None]
        l = self.lab("CW")
        self.a(f"s_cmp_gt_u32 s{sreg}, {m}\ns_cbranch_scc{1 if skip_if_gt else 0} {l}")
        if x and self.fb:
            self.ladder(n, x); self.a(f"{l}:")
            return
        assert len(set(o[1] for o in x)) <= 1
        if x: self.a(f"s_waitcnt vmcnt({n+len(x)})\ns_cbranch_vccnz {l}")
        self.a(f"s_waitcnt vmcnt({n})\n{l}:")
    def purge(self):
        keep = [i for i, o in enumerate(self.ops) if o[1] != 'gone']
        self.done = sum(1 for i in keep if i <= self.done) - 1
        self.ops = [self.ops[i] for i in keep]
    def role(self, w):
        l = self.lab("ROLE")
        self.a(f"s_cmp_eq_u32 s{sW}, {w}\ns_cselect_b64 vcc, -1, 0\ns_cbranch_scc0 {l}")
        return l
    def stamp(self, name):
        if self.amp and self.amp[0] == name: self.a("s_memrealtime s[16:17]")
        if not self.stamps: return
        if self.stamps is not True and name not in self.stamps and name != "end": return
        k = self.nstamp; self.nstamp += 1; self.stamp_names.append(name)
        assert k < 28
        self.a(f"""s_memrealtime s[94:95]
        s_waitcnt lgkmcnt(0)
        v_writelane_b32 v{vStamp}, s94, {k}""")
    def vm_masked(self, w, mask, ops):
        self.a(f"s_cmp_eq_u32 s{sW}, {w}\ns_cselect_b64 exec, {mask}, 0")
        for name, text in ops: self.vm(name, text)
        self.a("s_mov_b64 exec, -1")
    def store_fl(self, name, text, cond=None, fl='sc1'):
        if self.loc is None:
            self.vm(name, text + " " + fl, cond); return
        l1, l2 = self.lab("FAR"), self.lab("STD")
        self.a(f"s_cmp_eq_u32 s{sLoc}, 0\ns_cbranch_scc1 {l1}\n{text}\ns_branch {l2}\n{l1}:")
        self.vm(name, text + " sc1", cond)
        self.a(f"{l2}:")
    def only(self, w):
        l = self.lab("SKIP")
        self.a(f"s_cmp_lg_u32 s{sW}, {w}\ns_cbranch_scc1 {l}")
        return l

    def mfma(self, d, a, b, c):
        cc = "0" if c is None else vr(c)
        self.a(f"v_mfma_f32_16x16x32_bf16 {vr(d)}, {vr(a)}, {vr(b)}, {cc}")
    def dpp(self, op, d, s0, s1, ctl, bc=False):
        t = f"{op}_dpp v{d}, v{s0}" + (f", v{s1}" if s1 is not None else "") + f" {ctl} row_mask:0xf bank_mask:0xf" + (" bound_ctrl:0" if bc else "")
        self.a(t)
    def allred_rows(self, op, x, t):
        self.a(f"""v_mov_b32 v{t}, v{x}
        v_permlane16_swap_b32 v{x}, v{t}
        {op} v{x}, v{x}, v{t}
        v_mov_b32 v{t}, v{x}
        v_permlane32_swap_b32 v{x}, v{t}
        {op} v{x}, v{x}, v{t}""")

    def pack(self, r):
        self.a(f"""v_perm_b32 v{r}, v{r}, v{r+3}, s{sPk0}
        v_perm_b32 v{r+1}, v{r+1}, v{r+3}, s{sPk1}
        v_perm_b32 v{r+2}, v{r+2}, v{r+3}, s{sPk2}
        v_mov_b32 v{r+3}, s{sTag}""")
    def unpack(self, rs):
        for r in rs: self.a(f"v_perm_b32 v{r+3}, v{r+1}, v{r}, s{sUp0}")
        for r in rs: self.a(f"v_perm_b32 v{r+3}, v{r+2}, v{r+3}, s{sUp1}")
    def check_retry(self, tags, reload_fn, die=None, base='-1', pre=None):
        top, done = self.lab("CHK"), self.lab("OK")
        self.a(f"{top}:")
        if pre: pre()
        if die is not None:
            for k, t in enumerate(tags): self.a(f"v_xor_b32 v{die+k}, s{sTag}, v{t}")
            self.a(f"v_or_b32 v{die+2}, v{die}, v{die+1}\nv_cmp_lt_u32 vcc, 15, v{die+2}")
            assert len(tags) == 2
            tags = tags[:1]
        else: self.a(f"v_cmp_ne_u32 vcc, s{sTag}, v{tags[0]}")
        if len(tags) == 1:
            self.a(f"s_cbranch_vccz {done}")
        elif len(tags) == 8:
            for k, t in enumerate(tags[1:]):
                p = sCm + 2*(k % 2)
                self.a(f"v_cmp_ne_u32_e64 s[{p}:{p+1}], s{sTag}, v{t}")
                if k: q = sCm + 2*((k-1) % 2); self.a(f"s_or_b64 vcc, vcc, s[{q}:{q+1}]")
            self.a(f"s_or_b64 vcc, vcc, s[{sCm}:{sCm+1}]")
            self.a(f"s_cbranch_scc0 {done}")
        else:
            prs = [sCm, sCm+2, sTmp2]
            for k, t in enumerate(tags[1:]): self.a(f"v_cmp_ne_u32_e64 s[{prs[k]}:{prs[k]+1}], s{sTag}, v{t}")
            if len(tags) == 4:
                self.a(f"s_or_b64 s[{prs[1]}:{prs[1]+1}], s[{prs[1]}:{prs[1]+1}], s[{prs[2]}:{prs[2]+1}]")
                self.a(f"s_or_b64 s[{prs[0]}:{prs[0]+1}], s[{prs[0]}:{prs[0]+1}], s[{prs[1]}:{prs[1]+1}]")
            self.a(f"s_or_b64 vcc, vcc, s[{prs[0]}:{prs[0]+1}]")
            self.a(f"s_cbranch_scc0 {done}")
        self.a(f"""s_cmp_eq_u32 s{sCnt}, 0
        s_cbranch_scc1 {done}
        s_sub_u32 s{sCnt}, s{sCnt}, 1
        s_mov_b64 exec, vcc""")
        reload_fn()
        self.a(f"""s_mov_b64 exec, {base}
        s_waitcnt vmcnt(0)
        s_branch {top}
        {done}:""")

    def item(self, n):
        if n < 0: return f"wq{n+6}"
        return f"it{n}"
    def issue(self, n):
        R = self.R
        if n < 0:
            t = n + 6
            if t == 1: self.a(f"s_mov_b32 s{sWo}, 0x2000")
            elif t > 1: self.a(f"s_add_u32 s{sWo}, s{sWo}, 0x2000")
            self.vm(f"wq{t}", f"buffer_load_dwordx4 {vr(vWQB+4*t)}, v{vWq}, {srd(SWQ)}, {'0' if t == 0 else 's%d' % sWo} offen {self.wqfl}")
        elif n < 64:
            k = n & 31
            if k % 4 == 0 and n > 0:
                if k == 0: self.a(f"s_mov_b32 s{sT}, 0")
                else: self.a(f"s_add_u32 s{sT}, s{sT}, s{sStr}")
            reg = vKV + 4*k
            if n < 32:
                so = "0" if (self.pro and n < 4) else f"s{sT}"
                self.vm(self.item(n), f"buffer_load_dwordx4 {vr(reg)}, v{vK}, {srd(SK)}, {so} offen offset:{(k%4)*1024} {self.kfl}")
            else:
                self.vm(self.item(n), f"buffer_load_dwordx4 {vr(reg)}, v{vLin}, {srd(SV)}, s{sT} offen offset:{(k%4)*1024} {self.vfl}")
        else:
            k = n - 64
            va = vWo0 if k < 4 else vWo1
            self.vm(self.item(n), f"buffer_load_dwordx4 {vr(vKV+4*k)}, v{va}, {srd(SWO)}, 0 offen offset:{(k%4)*1152} {self.wofl}")

    def build_A(self, dst, rep):
        for i in range(4): self.a(f"v_and_b32 v{dst+i}, v{rep}, v{vM+i}")

    def q_mfma(self, t):
        A = vA0 if t % 2 == 0 else vA1
        rep = vT + (t % 2)
        sel = sSelLo if t % 2 == 0 else sSelHi
        self.a(f"v_perm_b32 v{rep}, v{vXd + t//2}, v{vXd + t//2}, s{sel}")
        self.build_A(A, rep)
        self.mfma(vD0, A, vWQB + 4*t, None if t == 0 else vD0)

    def qk_mfma(self, u):
        D = vD0 if u % 2 == 0 else vD1
        self.mfma(D, vKV + 8*u, vBA, None)
        self.mfma(D, vKV + 8*u + 4, vBB, D)
    def qk_fin(self, us):
        for u in us:
            D = vD0 if u % 2 == 0 else vD1
            self.dpp("v_add_f32", vS+u, D+1, D, "quad_perm:[1,1,1,1]")
            self.dpp("v_add_f32", D+2, D+3, D+2, "quad_perm:[0,1,3,3]")
        for u in us:
            D = vD0 if u % 2 == 0 else vD1
            self.dpp("v_add_f32", vS+u, D+2, vS+u, "quad_perm:[2,2,2,2]")
        for u in us:
            if u == 0: pass
            elif u == 1: self.a(f"v_max_f32 v{vMx}, v{vS}, v{vS+1}")
            else: self.a(f"v_max_f32 v{vMx}, v{vMx}, v{vS+u}")

    def softmax_max(self):
        t = vT
        self.dpp("v_mov_b32", vMc, vMx, None, "quad_perm:[0,0,0,0]")
        self.dpp("v_max_f32", vMc, vMc, vMc, "row_half_mirror")
        self.allred_rows("v_max_f32", vMc, t)
        self.a(f"v_mul_f32 v{vMc}, s{sC}, v{vMc}")
    def softmax_p(self, us):
        for j, u in enumerate(us):
            self.a(f"v_fma_f32 v{vS+u}, v{vS+u}, s{sC}, -v{vMc}")
        for j, u in enumerate(us):
            self.dpp("v_exp_f32", vT+j, vS+u, None, "quad_perm:[0,0,0,0]")
        for j, u in enumerate(us):
            self.a(f"v_cvt_pk_bf16_f32 v{vS+u}, v{vT+j}, v{vT+j}")
            if u == 0: self.a(f"v_mov_b32 v{vLs}, v{vT+j}")
            else: self.a(f"v_add_f32 v{vLs}, v{vLs}, v{vT+j}")
    def ml_publish(self):
        self.dpp("v_add_f32", vLs, vLs, vLs, "row_half_mirror")
        self.allred_rows("v_add_f32", vLs, vT)
        self.a(f"v_mov_b32 v{vTg}, s{sTag}\nv_lshlrev_b32 v{vT}, 7, v{vL}\ns_mov_b64 exec, 0x101")
        if self.mlsc: self.vm("mlpub", f"buffer_store_dwordx3 v[{vMc}:{vTg}], v{vT}, {srd(SWS)}, s{sMLs} offen sc1")
        else: self.store_fl("mlpub", f"buffer_store_dwordx3 v[{vMc}:{vTg}], v{vT}, {srd(SWS)}, s{sMLs} offen", None, self.mst)
        self.a("s_mov_b64 exec, -1")
    def pv(self, j):
        A = vA0 if j % 2 == 0 else vA1
        P = vS + (j >> 1)
        if j % 2 == 0:
            self.a(f"v_and_b32 v{A}, v{P}, v{vM}\nv_and_b32 v{A+1}, v{P}, v{vM+1}")
            self.dpp("v_and_b32", A+2, P, vM+2, "row_shr:4", True)
            self.dpp("v_and_b32", A+3, P, vM+3, "row_shr:4", True)
        else:
            self.dpp("v_and_b32", A, P, vM, "row_shl:4", True)
            self.dpp("v_and_b32", A+1, P, vM+1, "row_shl:4", True)
            self.a(f"v_and_b32 v{A+2}, v{P}, v{vM+2}\nv_and_b32 v{A+3}, v{P}, v{vM+3}")
        return lambda: self.mfma(vO, A, vKV + 4*j, None if j == 0 else vO)

    def wave_allred(self, op, x, t):
        self.dpp(op, x, x, x, "quad_perm:[1,0,3,2]")
        self.dpp(op, x, x, x, "quad_perm:[2,3,0,1]")
        self.dpp(op, x, x, x, "row_half_mirror")
        self.dpp(op, x, x, x, "row_ror:8")
        self.allred_rows(op, x, t)

    def wq_addr(self):
        if self.wqw == 128:
            return f"""v_mul_u32_u24 v{vT+4}, 48, v{vT}
        v_mad_u32_u24 v{vT+4}, v{vT+3}, 6, v{vT+4}  ; r0
        v_lshlrev_b32 v{vX}, 1, v{vT+4}
        v_and_b32 v{vT+5}, 7, v{vL}
        v_lshlrev_b32 v{vT+5}, 4, v{vT+5}           ; (l&7)*16
        v_lshl_or_b32 v{vWq}, v{vT+4}, 13, v{vT+5}
        {'s_bfe_u32 s%d, s2, 0x10002' % sT0 if self.numa else 's_lshr_b32 s%d, s2, 7' % sT0}                   ; s>>2
        s_mul_i32 s{sT1}, s{sT0}, 0x240000
        s_mul_i32 s{sT0}, s{sT0}, 576
        s_lshl_b32 s{sCnt}, s{sKvh}, 9
        s_add_u32 s{sT1}, s{sT1}, s{sCnt}
        s_and_b32 s{sCnt}, s{sS}, 3
        s_lshl_b32 s{sCnt}, s{sCnt}, 7
        s_add_u32 s{sT1}, s{sT1}, s{sCnt}
        s_mov_b32 s{SX+2}, 576
        s_mov_b32 s{SX+3}, 0x20000
        s_mov_b32 s{SWQ+2}, {287*8192+128}
        s_mov_b32 s{SWQ+3}, 0x20000"""
        return f"""v_lshrrev_b32 v{vT+6}, 5, v{vL}
        v_mul_u32_u24 v{vT+4}, 12, v{vT}
        v_mad_u32_u24 v{vT+4}, v{vT+6}, 6, v{vT+4}  ; r0
        v_lshrrev_b32 v{vT+5}, 3, v{vL}
        v_xor_b32 v{vT+5}, v{vT+5}, v{vT+1}
        v_and_b32 v{vT+5}, 1, v{vT+5}
        v_lshlrev_b32 v{vT+5}, 12, v{vT+5}
        v_lshl_or_b32 v{vX}, v{vT+4}, 1, v{vT+5}
        v_and_b32 v{vT+5}, 31, v{vL}
        v_lshlrev_b32 v{vT+5}, 4, v{vT+5}
        v_lshl_or_b32 v{vWq}, v{vT+4}, 13, v{vT+5}
        v_and_b32 v{vT+5}, 7, v{vL}
        v_lshlrev_b32 v{vT+5}, 4, v{vT+5}           ; (l&7)*16
        s_mul_i32 s{sT1}, s{sS}, {72*8192}
        s_mul_i32 s{sT0}, s{sS}, 144
        s_lshl_b32 s{sT}, s{sKvh}, 9
        s_add_u32 s{sT1}, s{sT1}, s{sT}
        s_mov_b32 s{SX+2}, 144
        s_mov_b32 s{SX+3}, 0x20000
        s_mov_b32 s{SWQ+2}, {71*8192+512}
        s_mov_b32 s{SWQ+3}, 0x20000"""
    def wgmap(self):
        if self.xmap == 0:
            return f"s_and_b32 s{sKvh}, s2, 15\ns_and_b32 s{sG}, s2, 31"
        return (f"s_bfe_u32 s{sKvh}, s2, 0x20003\ns_and_b32 s{sG}, s2, 7\ns_lshl_b32 s{sG}, s{sG}, 2\n"
                f"s_or_b32 s{sG}, s{sG}, s{sKvh}\ns_and_b32 s{sKvh}, s{sG}, 15")
    def gen(self):
        a = self.a; R = self.R
        C = (128 ** -0.5) * math.log2(math.e)
        import struct
        Cbits = struct.unpack("<I", struct.pack("<f", C))[0]
        a(f"""
        s_cmpk_ge_u32 s2, 256
        s_cbranch_scc1 L_end
        s_load_dwordx16 s[4:19], s[0:1], 0
        """)
        ld2, ld3 = "s_load_dwordx8 s[20:27], s[0:1], 64", "s_load_dwordx2 s[28:29], s[0:1], 96"
        if self.pro < 3: a(ld2)
        if self.pro < 2: a(ld3)
        if self.stamps or self.amp: a("s_memrealtime s[96:97]")
        if self.numa:
            assert self.pro == 1 and self.xmap == 0 and self.wqw == 128
            a(f"""
            v_bfe_u32 v{vT+1}, v0, 4, 2                ; l>>4
            s_movk_i32 s{sT0}, 0x4c
            v_and_or_b32 v{vK}, v0, s{sT0}, v{vT+1}
            v_lshlrev_b32 v{vK}, 6, v{vK}
            v_and_b32 v{vT+2}, 3, v0
            v_lshl_or_b32 v{vK}, v{vT+2}, 4, v{vK}
            v_and_b32 v{vT+2}, 0x180, v0
            v_lshl_or_b32 v{vK}, v{vT+2}, 7, v{vK}
            s_lshr_b32 s{sKvh}, s2, 1
            s_and_b32 s{sKvh}, s{sKvh}, 12
            s_and_b32 s{sS}, s2, 3
            s_or_b32 s{sKvh}, s{sKvh}, s{sS}
            s_lshr_b32 s{sS}, s2, 6
            s_lshl2_add_u32 s{sTag}, s{sKvh}, s{sS}
            s_lshl_b32 s{sTag}, s{sTag}, 6
            s_lshr_b32 s{sT0}, s2, 2
            s_xor_b32 s{sT0}, s{sT0}, s2
            {'s_not_b32 s%d, s%d' % (sT0, sT0) if self.numa == 2 else ''}
            s_and_b32 s{sT0}, s{sT0}, 1
            s_or_b32 s{sTag}, s{sTag}, s{sT0}
            s_lshl_b32 s{sTag}, s{sTag}, 13
            s_and_b32 s{sT0}, s2, 4
            s_or_b32 s{sS}, s{sS}, s{sT0}
            s_mov_b32 s{SK+3}, 0x20000
            s_mov_b32 s{SK+2}, 0x7e000
            s_bitcmp1_b32 s2, 5
            s_waitcnt lgkmcnt(0)
            s_cselect_b64 s[6:7], s[16:17], s[6:7]
            s_add_u32 s{SK}, s6, s{sTag}
            s_addc_u32 s{SK+1}, s7, 0
            """)
        elif self.pro:
            assert self.xmap == 0 and self.wqw == 128
            a(f"""
            v_bfe_u32 v{vT+1}, v0, 4, 2                ; l>>4
            s_movk_i32 s{sT0}, 0x1cc
            v_and_or_b32 v{vK}, v0, s{sT0}, v{vT+1}
            v_lshlrev_b32 v{vK}, 6, v{vK}
            v_and_b32 v{vT+2}, 3, v0
            v_lshl_or_b32 v{vK}, v{vT+2}, 4, v{vK}
            s_and_b32 s{sKvh}, s2, 15
            s_lshr_b32 s{sS}, s2, 5
            s_lshl3_add_u32 s{sTag}, s{sKvh}, s{sS}
            s_lshl_b32 s{sTag}, s{sTag}, 18
            s_mov_b32 s{SK+3}, 0x20000
            s_lshl_b32 s{SK+2}, s{SK+3}, 1
            s_bitcmp1_b32 s2, 4
            s_waitcnt lgkmcnt(0)
            s_cselect_b64 s[6:7], s[16:17], s[6:7]
            s_add_u32 s{SK}, s6, s{sTag}
            s_addc_u32 s{SK+1}, s7, 0
            """)
        else:
            a(f"""
            v_lshrrev_b32 v{vT}, 6, v0
            v_and_b32 v{vL}, 63, v0
            v_readfirstlane_b32 s{sW}, v{vT}
            s_lshr_b32 s{sS}, s2, 5
            {self.wgmap()}
            v_lshrrev_b32 v{vT+1}, 4, v{vL}            ; l>>4
            v_and_b32 v{vT+2}, 8, v{vL}
            v_lshrrev_b32 v{vT+2}, 1, v{vT+2}
            v_or_b32 v{vT+3}, v{vT+1}, v{vT+2}          ; grp
            {self.wq_addr()}
            s_mov_b32 s{sStr}, 0x8000
            s_lshl_b32 s{sTag}, s{sKvh}, 21
            s_lshl_b32 s{sEoff}, s{sS}, 18
            s_add_u32 s{sTag}, s{sTag}, s{sEoff}
            s_lshl_b32 s{sEoff}, s{sW}, 12
            s_add_u32 s{sTag}, s{sTag}, s{sEoff}
            s_sub_u32 s{SK+2}, 0x40000, s{sEoff}
            s_mov_b32 s{SK+3}, 0x20000
            v_and_b32 v{vK}, 12, v{vL}
            v_or_b32 v{vK}, v{vK}, v{vT+1}
            v_lshlrev_b32 v{vK}, 2, v{vK}
            v_and_or_b32 v{vK}, v{vL}, 3, v{vK}
            v_lshlrev_b32 v{vK}, 4, v{vK}
            s_mov_b32 s{sT}, 0
            s_bitcmp1_b32 s{sG}, 4
            s_waitcnt lgkmcnt(0)
            s_cselect_b64 s[6:7], s[16:17], s[6:7]
            s_cselect_b64 s[4:5], s[14:15], s[4:5]
            s_cselect_b64 s[10:11], s[20:21], s[10:11]
            s_cselect_b64 s[8:9], s[18:19], s[8:9]
            s_cselect_b64 s[12:13], s[22:23], s[12:13]
            s_cselect_b32 s{sEoff}, 0x100, 0
            s_add_u32 s{SK}, s6, s{sTag}
            s_addc_u32 s{SK+1}, s7, 0
            """)
        self.stamp("karg")
        burst, rest = self.order.split("|")
        assert (burst+rest).count("W") == 6 and burst.count("X") == 1 and "X" not in rest
        S = []; nk = nw = 0
        for c in burst + rest:
            if c == "K": S.append(nk); nk += 1
            elif c == "W": S.append(-6+nw); nw += 1
        S += list(range(nk, 64))
        B = len(burst) - 1
        strset = False
        pos = 0; first = True
        for c in burst:
            if c != "K" and first:
                self.stamp("k0"); first = False
                if self.pro >= 3: a(ld2)
                if self.pro >= 2: a(ld3)
                if self.pro:
                    gdef = f"s_and_b32 s{sG}, s2, 31"
                    if self.numa: gdef = f"s_lshr_b32 s{sG}, s2, 1\ns_and_b32 s{sG}, s{sG}, 16\ns_or_b32 s{sG}, s{sG}, s{sKvh}"
                    a(f"""
                    v_lshrrev_b32 v{vT}, 6, v0
                    v_and_b32 v{vL}, 63, v0
                    v_readfirstlane_b32 s{sW}, v{vT}
                    {gdef}
                    v_and_b32 v{vT+2}, 8, v{vL}
                    v_lshrrev_b32 v{vT+2}, 1, v{vT+2}
                    v_or_b32 v{vT+3}, v{vT+1}, v{vT+2}          ; grp
                    {self.wq_addr()}
                    s_bitcmp1_b32 s2, {5 if self.numa else 4}
                    {'s_waitcnt lgkmcnt(0)' if self.pro >= 2 else ''}
                    s_cselect_b64 s[4:5], s[14:15], s[4:5]
                    s_cselect_b64 s[10:11], s[20:21], s[10:11]
                    s_cselect_b64 s[8:9], s[18:19], s[8:9]
                    s_cselect_b64 s[12:13], s[22:23], s[12:13]
                    s_cselect_b32 s{sEoff}, 0x100, 0
                    """)
                a(f"""
                s_add_u32 s{SX}, s4, s{sT0}
                s_addc_u32 s{SX+1}, s5, 0
                s_add_u32 s{SWQ}, s10, s{sT1}
                s_addc_u32 s{SWQ+1}, s11, 0
                """)
            if c == "X": self.vm("x", f"buffer_load_dwordx3 {vr(vXd,3)}, v{vX}, {srd(SX)}, 0 offen")
            else:
                if self.pro and S[pos] == 4:
                    a(f"s_mov_b32 s{sStr}, {0x10000 if self.numa else 0x8000:#x}\ns_mov_b32 s{sT}, 0"); strset = True
                    assert not first or True
                self.issue(S[pos]); pos += 1
        if self.stamps:
            a(f"v_writelane_b32 v{vStamp}, s96, 31")
            a(f"s_getreg_b32 s94, hwreg(HW_REG_XCC_ID)\nv_writelane_b32 v{vStamp}, s94, 30\ns_getreg_b32 s94, hwreg(HW_REG_HW_ID)\nv_writelane_b32 v{vStamp}, s94, 29")
        if self.pro:
            if not strset: a(f"s_mov_b32 s{sStr}, {0x10000 if self.numa else 0x8000:#x}\ns_mov_b32 s{sT}, 0")
            if self.numa:
                a(f"""s_lshl_b32 s{sT0}, s{sW}, 13
                s_and_b32 s{sT0}, s{sT0}, 0xc000
                s_and_b32 s{sT1}, s{sW}, 1
                s_lshl_b32 s{sT1}, s{sT1}, 12
                s_or_b32 s{sT0}, s{sT0}, s{sT1}
                s_add_u32 s{sTag}, s{sTag}, s{sT0}
                s_sub_u32 s{SV+2}, 0x7e000, s{sT0}""")
            else: a(f"""s_lshl_b32 s{sT0}, s{sW}, 12
            s_add_u32 s{sTag}, s{sTag}, s{sT0}
            s_sub_u32 s{SV+2}, 0x40000, s{sT0}""")
        else: a(f"s_mov_b32 s{SV+2}, s{SK+2}")
        a(f"""
        s_add_u32 s{SV}, s8, s{sTag}
        s_addc_u32 s{SV+1}, s9, 0
        s_mov_b32 s{SV+3}, 0x20000
        s_load_dword s{sTag}, s[28:29], s{sEoff}
        s_mul_i32 s{sT0}, s{sKvh}, {256*1152}
        s_mul_i32 s{sT1}, s{sW if self.p2 else sS}, {32*1152}
        s_add_u32 s{sT0}, s{sT0}, s{sT1}
        s_add_u32 s{SWO}, s12, s{sT0}
        s_addc_u32 s{SWO+1}, s13, 0
        s_mov_b32 s{SWO+2}, {32*1152}
        s_mov_b32 s{SWO+3}, 0x20000
        """)
        if self.tlbwarm:
            self.vm("tw0", f"buffer_load_dword v{vT+14}, off, {srd(SV)}, 0")
            self.vm("tw1", f"buffer_load_dword v{vT+15}, off, {srd(SWO)}, 0")
        a(f"""
        s_mov_b32 s{SWS}, s28
        s_mov_b32 s{SWS+1}, s29
        s_mov_b32 s{SWS+2}, {0x800000 if (self.prep or self.pstr > 32) else 0x200000:#x}
        s_mov_b32 s{SWS+3}, 0x20000
        v_lshlrev_b32 v{vLin}, 4, v{vL}
        s_mov_b32 s{sA}, 0x0f0f0f0f
        s_mov_b32 s{sA+1}, 0x0f0f0f0f
        v_mov_b32 v{vT+12}, 0xffff
        v_mov_b32 v{vT+13}, 0
        v_lshlrev_b64 v[{vT+12}:{vT+13}], v{vLin}, v[{vT+12}:{vT+13}]
        s_mov_b32 s{sSelLo}, 0x01000100
        s_mov_b32 s{sSelHi}, 0x03020302
        v_cndmask_b32_e64 v{vM}, 0, v{vT+12}, s[{sA}:{sA+1}]
        v_cndmask_b32_e64 v{vM+1}, 0, v{vT+13}, s[{sA}:{sA+1}]
        v_cndmask_b32_e64 v{vM+2}, v{vT+12}, 0, s[{sA}:{sA+1}]
        v_cndmask_b32_e64 v{vM+3}, v{vT+13}, 0, s[{sA}:{sA+1}]
        s_lshl_b32 s{sQslot}, s{sG}, 3
        s_add_u32 s{sQslot}, s{sQslot}, s{sS}
        s_lshl_b32 s{sQslot}, s{sQslot}, {8 if self.wqw == 128 else 10}
        s_add_u32 s{sQslot}, s{sQslot}, {QBOX}
        s_mov_b32 s{sPk0}, 0x07060501
        s_mov_b32 s{sPk1}, 0x07060502
        s_mov_b32 s{sPk2}, 0x07060503
        s_mov_b32 s{sCnt}, {RETRY}
        """)
        a(f"""v_mov_b32 v{vWo0}, v{vT+3}
        v_mov_b32 v{vWo1}, v{vT+5}
        v_mov_b32 v{vOW}, v{vT+1}""")
        if self.loc == 'q':
            a(f"s_getreg_b32 s{sXcc}, hwreg(HW_REG_XCC_ID, 0, 4)")
        if self.ctl and not self.fb:
            for reg, tab in ((sBU, self.xb), (sTU, self.xt)):
                tab = tab or [0]*8
                lo = sum(v << (8*i) for i, v in enumerate(tab[:4])); hi = sum(v << (8*i) for i, v in enumerate(tab[4:]))
                a(f"""s_mov_b32 s16, {lo:#x}
                s_mov_b32 s17, {hi:#x}
                s_lshl_b32 s{reg}, s{sXcc if self.xidx == 'x' else sS}, 3
                s_lshr_b64 s[16:17], s[16:17], s{reg}
                s_and_b32 s{reg}, s16, 0xff""")
        if self.loc is not None and self.loc != 'q':
            assert self.roles
            a(f"""s_getreg_b32 s{sXcc}, hwreg(HW_REG_XCC_ID)
            s_lshl_b32 s{sXg}, s{sG}, 7
            s_add_u32 s{sXg}, s{sXg}, {XBOX}
            s_lshl_b32 s{sT0}, s{sS}, 3
            s_add_u32 s{sT0}, s{sT0}, s{sXg}
            s_waitcnt lgkmcnt(0)
            s_mul_i32 s{sTag}, s{sTag}, 1664525
            s_add_u32 s{sTag}, s{sTag}, 1013904223""")
            l = self.role(0)
            a(f"""v_mov_b32 v{vT+14}, s{sXcc}
            v_mov_b32 v{vT+15}, s{sTag}
            s_mov_b64 exec, 1""")
            if not self.diag & 32: self.vm("xst", f"buffer_store_dwordx2 v[{vT+14}:{vT+15}], off, {srd(SWS)}, s{sT0} sc1", 0)
            a(f"s_mov_b64 exec, -1\n{l}:")
        self.stamp("pre")

        NB1, NQG = self.NB1, self.NQG
        NQ = NQG + R
        tasks = {n: [] for n in range(-6, 80)}
        T = lambda n, f: tasks[n].append(f)
        kf = B - 6
        for t in range(6): T(max(B, S.index(t-6) + R) - 6, lambda t=t: self.q_mfma(t))
        nqp = max(B, S.index(-1) + R) - 6
        NB1 = max(NB1, nqp); NQG = max(NQG, NB1+1); NQ = NQG + R
        def qpart512():
            a(f"""
            v_and_b32 v{vT+2}, 15, v{vL}
            v_lshlrev_b32 v{vT+2}, 5, v{vT+2}
            v_and_b32 v{vT+3}, 1, v{vOW}
            v_lshl_or_b32 v{vT+2}, v{vT+3}, 4, v{vT+2}
            v_lshrrev_b32 v{vT+3}, 1, v{vOW}
            v_lshl_or_b32 v{vT+2}, v{vT+3}, 9, v{vT+2}
            s_lshl_b32 s{sT0}, s{sW}, 10
            v_add_u32 v{vT+2}, s{sT0}, v{vT+2}
            ds_write_b128 v{vT+2}, {vr(vD0)} offset:{L_QP}""")
        def qpart():
            a(f"""
            v_permlane32_swap_b32 v{vD0}, v{vD0+2}
            v_permlane32_swap_b32 v{vD0+1}, v{vD0+3}
            v_lshlrev_b32 v{vT+2}, 1, v{vWo1}            ; (l&7)*32
            v_and_b32 v{vT+3}, 1, v{vOW}
            v_lshl_or_b32 v{vT+2}, v{vT+3}, 4, v{vT+2}
            v_lshrrev_b32 v{vT+3}, 1, v{vOW}
            v_lshl_or_b32 v{vT+2}, v{vT+3}, 3, v{vT+2}
            s_lshl_b32 s{sT0}, s{sW}, 8
            """)
            self.dpp("v_add_f32", vD0, vD0+2, vD0, "row_ror:8")
            self.dpp("v_add_f32", vD0+1, vD0+3, vD0+1, "row_ror:8")
            a(f"""v_add_u32 v{vT+2}, s{sT0}, v{vT+2}
            s_mov_b32 exec_lo, 0x00ff00ff
            s_mov_b32 exec_hi, 0x00ff00ff
            ds_write_b64 v{vT+2}, v[{vD0}:{vD0+1}] offset:{L_QP}
            s_mov_b64 exec, -1""")
        T(kf, lambda: self.stamp("st1"))
        T(kf+1, lambda: self.stamp("st2"))
        T(nqp, qpart if self.wqw == 128 else qpart512)
        def bar1():
            a("s_waitcnt lgkmcnt(0)")
            if self.loc in (None, 'q'):
                a(f"s_mul_i32 s{sTag}, s{sTag}, 1664525")
                a(f"s_add_u32 s{sTag}, s{sTag}, 1013904223")
            if not self.diag & 2: a("s_barrier")
            self.stamp("bar1")
            l = self.role(0) if self.roles else self.only(0)
            if self.wqw == 128: a("s_mov_b64 exec, 0xffff")
            for w in range(6): a(f"ds_read_b128 {vr(vWQB+4*w)}, v{vLin} offset:{L_QP+(256 if self.wqw == 128 else 1024)*w}")
            for k, (x, y) in enumerate([(0,1),(2,3),(4,5),(0,2),(0,4)]):
                if k < 3: a(f"s_waitcnt lgkmcnt({4-2*k})")
                for h in (0, 2):
                    a(f"v_pk_add_f32 v[{vWQB+4*x+h}:{vWQB+4*x+h+1}], v[{vWQB+4*x+h}:{vWQB+4*x+h+1}], v[{vWQB+4*y+h}:{vWQB+4*y+h+1}]")
            self.pack(vWQB)
            if self.loc == 'q': a(f"v_xor_b32 v{vWQB+3}, s{sXcc}, v{vWQB+3}")
            if self.loc not in (None, 'q'):
                a(f"s_mov_b64 exec, -1\n{l}:")
                return
            if self.roles:
                self.vm("qpub", f"buffer_store_dwordx4 {vr(vWQB)}, v{vLin}, {srd(SWS)}, s{sQslot} offen {self.qst}", 0)
                a(f"s_mov_b64 exec, -1\n{l}:")
                return
            a(f"{l}:")
            self.vm_masked(0, "0xffff" if self.wqw == 128 else "-1", [("qpub", f"buffer_store_dwordx4 {vr(vWQB)}, v{vLin}, {srd(SWS)}, s{sQslot} offen {self.qst}")])
        T(NB1, bar1)
        if self.loc not in (None, 'q'):
            NXL = NB1 + self.loc
            def xld():
                l = self.role(0)
                a(f"v_lshlrev_b32 v{vWQB+6}, 3, v{vL}\ns_mov_b64 exec, 0xff")
                if not self.diag & 64: self.vm("xld", f"buffer_load_dwordx2 v[{vWQB+4}:{vWQB+5}], v{vWQB+6}, {srd(SWS)}, s{sXg} offen sc1", 0)
                a(f"s_mov_b64 exec, -1\n{l}:")
            T(NXL, xld)
            def xchk():
                l = self.role(0)
                if not self.diag & 64: self.wait("xld", 0)
                a(f"""s_mov_b64 exec, 0xff
                v_cmp_eq_u32 vcc, s{sXcc}, v{vWQB+4}
                v_cmp_eq_u32_e64 s[{sCm}:{sCm+1}], s{sTag}, v{vWQB+5}
                s_and_b64 vcc, vcc, s[{sCm}:{sCm+1}]
                s_cmp_eq_u64 vcc, exec
                s_cselect_b32 s{sLoc}, 1, {1 if self.diag & 96 else 0}
                s_mov_b64 vcc, -1
                v_mov_b32 v{vWQB+4}, s{sLoc}
                s_mov_b64 exec, {'0xffff' if self.wqw == 128 else '-1'}""")
                self.store_fl("qpub", f"buffer_store_dwordx4 {vr(vWQB)}, v{vLin}, {srd(SWS)}, s{sQslot} offen", 0)
                a(f"""ds_write_b32 v{vLin}, v{vWQB+4} offset:{L_FL}
                s_mov_b64 exec, -1
                s_waitcnt lgkmcnt(0)
                {l}:""")
            T(NXL+R, xchk)
            assert NXL + R < NQG
        LB = {32: 10, 64: 11, 128: 12, 256: 13, 512: 14}[self.pstr]
        PB = 0x200000 if (self.prep or self.pstr > 32) else PBOX
        cidx = f"s_lshl_b32 s{sCi}, s{sS}, 4"
        if self.numa: cidx = f"s_and_b32 s{sCi}, s{sS}, 3\ns_lshl_b32 s{sCi}, s{sCi}, 1\ns_lshr_b32 s{sT1}, s{sS}, 2\ns_or_b32 s{sCi}, s{sCi}, s{sT1}\ns_lshl_b32 s{sCi}, s{sCi}, 4"
        def setup1():
            a(f"""
            s_mov_b32 s{sUp0}, 0x0c04000c
            s_mov_b32 s{sUp1}, 0x04020100
            s_mov_b32 s{SOUT}, s24
            s_mov_b32 s{SOUT+1}, s25
            s_mov_b32 s{SOUT+2}, 2304
            s_mov_b32 s{SOUT+3}, 0x20000
            s_mov_b32 s{sC}, {Cbits:#x}
            s_lshl_b32 s{sQg}, s{sG}, 11
            s_add_u32 s{sMLg}, s{sQg}, {MLBOX}
            s_lshl_b32 s{sQg}, s{sG}, {11 if self.wqw == 128 else 13}
            s_add_u32 s{sQg}, s{sQg}, {QBOX}
            s_add_u32 s{sQg2}, s{sQg}, 4096
            s_lshl_b32 s{sT0}, s{sS}, 3
            s_add_u32 s{sT0}, s{sT0}, s{sW}
            s_lshl_b32 s{sT0}, s{sT0}, 4
            s_add_u32 s{sMLs}, s{sMLg}, s{sT0}
            s_lshl_b32 s{sT0}, s{sG}, 13
            s_add_u32 s{sT0}, s{sT0}, {OBOX}
            s_lshl_b32 s{sT1}, s{sW if self.p2 else sS}, 10
            s_add_u32 s{sOg}, s{sT0}, s{sT1}
            s_lshl_b32 s{sT1}, s{sW}, 10
            s_add_u32 s{sOs}, s{sT0}, s{sT1}
            s_lshl_b32 s{sT1}, s{sS}, 7
            s_add_u32 s{sOs}, s{sOs}, s{sT1}
            {cidx}
            s_add_u32 s{sCi}, s{sCi}, s{sKvh}
            s_lshr_b32 s{sT0}, s{sG}, 4
            s_mul_i32 s{sT0}, s{sT0}, 72
            s_add_u32 s{sT1}, s{sT0}, s{sCi}
            s_lshl_b32 s{sOutO}, s{sT1}, 4
            s_lshl_b32 s{sPg}, s{sT1}, {LB if self.p2 else 12}
            s_add_u32 s{sPg}, s{sPg}, {PB}
            """)
            if self.p2:
                a(f"""s_lshl_b32 s{sT1}, s{sS}, 3
                s_add_u32 s{sT0}, s{sT0}, s{sT1}
                s_lshl_b32 s{sT0}, s{sT0}, {LB}
                s_lshl_b32 s{sT1}, s{sKvh}, {LB-5}
                s_add_u32 s{sT0}, s{sT0}, s{sT1}
                s_add_u32 s{sPs}, s{sT0}, {PB}
                s_cmp_ge_u32 s{sCi}, 8
                s_cselect_b32 s{sExC+1}, -1, 0
                s_cmp_lt_u32 s{sCi}, 64
                s_cselect_b32 s{sExC}, -1, 0
                """)
            else:
                a(f"""s_lshl_b32 s{sT0}, s{sT0}, 12
                s_lshl_b32 s{sT1}, s{sW}, 15
                s_add_u32 s{sT0}, s{sT0}, s{sT1}
                s_lshl_b32 s{sT1}, s{sKvh}, 3
                s_add_u32 s{sT1}, s{sT1}, s{sS}
                s_lshl_b32 s{sT1}, s{sT1}, 5
                s_add_u32 s{sT0}, s{sT0}, s{sT1}
                s_add_u32 s{sPs}, s{sT0}, {PBOX}
                """)
            a(f"""
            s_mov_b32 s{sExO}, 0x01010101
            s_mov_b32 s{sExO+1}, 0x01010101
            s_mov_b32 s{sExP}, 0x00ff00ff
            s_mov_b32 s{sT1}, 0x100000
            s_cmp_eq_u32 s{sW}, {'s%d' % sS if self.p2 else 7}
            s_cselect_b32 s{sExP+1}, s{sExP}, 0
            s_cselect_b32 s{sT1}, 0x80, s{sT1}
            s_mov_b32 s{sExOut}, 0x00030003
            s_mov_b32 s{sExOut+1}, 0x00030003
            s_lshl_b32 s{sT0}, s{sS}, 3
            s_lshl_b64 s[{sExF}:{sExF+1}], 0xff, s{sT0}
            """)
            a(f"""
            v_lshl_or_b32 v{vOG}, v{vWo1}, 3, 0              ; (l&7)*128
            v_lshl_or_b32 v{vOG}, v{vWo0}, 4, v{vOG}          ; + slot*16
            v_and_b32 v{vT}, 1, v{vOW}                       ; (l>>4)&1
            v_lshrrev_b32 v{vT+1}, 1, v{vOW}                 ; l>>5
            """)
            if self.p2:
                a(f"""
                s_cmp_ge_u32 s{sW}, s{sS}
                s_cselect_b32 s{sT0}, 1, 0
                s_add_u32 s{sT0}, s{sT0}, s{sW}
                s_lshl_b32 s{sT0}, s{sT0}, 8
                s_add_u32 s{sT0}, s{sT0}, {L_PZ + 7*256}
                v_lshlrev_b32 v{vPW}, 1, v{vWo1}                 ; (l&7)*32
                v_lshl_or_b32 v{vPW}, v{vT}, 4, v{vPW}
                v_lshlrev_b32 v{vT+2}, 8, v{vT+1}
                v_sub_u32 v{vPW}, v{vPW}, v{vT+2}
                v_add_u32 v{vPW}, s{sT0}, v{vPW}
                v_and_b32 v{vPR}, 15, v{vL}
                v_lshlrev_b32 v{vPR}, 4, v{vPR}
                v_xor_b32 v{vT+2}, 1, v{vT}
                v_lshl_or_b32 v{vPR}, v{vT+2}, 11, v{vPR}
                s_lshl_b32 s{sT0}, s{sS}, 8
                s_add_u32 s{sT0}, s{sT0}, {L_PZ}
                v_add_u32 v{vPR}, s{sT0}, v{vPR}
                v_and_b32 v{vPP}, 14, v{vL}
                v_lshlrev_b32 v{vPP}, {LB-1}, v{vPP}                  ; (gc>>1)*box
                v_and_b32 v{vT+2}, 1, v{vL}
                v_lshl_or_b32 v{vPP}, v{vT+2}, 4, v{vPP}
                v_mul_u32_u24 v{vT+2}, {(8*1024+512) << (LB-10)}, v{vT}
                v_add_u32 v{vPP}, v{vPP}, v{vT+2}
                {'v_mul_u32_u24 v%d, %d, v%d' % (vT+2, self.prep, vT+1) if self.prep else ''}
                {'v_add_u32 v%d, v%d, v%d' % (vPP, vPP, vT+2) if self.prep else ''}
                {'v_lshl_or_b32 v%d, v%d, 3, v%d' % (vPP, vT+1, vPP) if self.pubat else ''}
                s_cmp_lt_u32 s{sW}, 6
                s_cselect_b64 exec, -1, 0
                s_lshl_b32 s{sT0}, s{sW}, 10
                v_add_u32 v{vT+2}, s{sT0}, v{vLin}
                v_mov_b32 v{vT+4}, 0
                v_mov_b32 v{vT+5}, 0
                v_mov_b32 v{vT+6}, 0
                v_mov_b32 v{vT+7}, 0
                ds_write_b128 v{vT+2}, {vr(vT+4)} offset:{L_PZ}
                s_mov_b64 exec, -1
                """)
            else:
                a(f"""v_lshlrev_b32 v{vPP}, 8, v{vWo1}                 ; (l&7)*4096
                v_lshl_or_b32 v{vPP}, v{vT}, 4, v{vPP}
                v_lshl_or_b32 v{vPP}, v{vT+1}, 15, v{vPP}""")
            a(f"""
            v_and_b32 v{vOut}, 1, v{vL}
            v_lshl_add_u32 v{vOut}, v{vOut}, 2, v{vOW}
            v_lshlrev_b32 v{vOut}, 1, v{vOut}
            v_lshrrev_b32 v{vFW}, 2, v{vWo1}                 ; (l&7)*4
            s_lshr_b32 s{sT0}, s{sW}, 2
            s_lshl_b32 s{sT0}, s{sT0}, 5
            v_add_u32 v{vFR}, s{sT0}, v{vFW}
            v_and_b32 v{vOP}, 0x38, v{vL}
            v_lshlrev_b32 v{vOP}, 1, v{vOP}                  ; (l>>3)*16
            v_mul_u32_u24 v{vOR}, {L_OSTR//16}, v{vWo1}       ; (l&7)*1040
            v_add_u32 v{vOR}, v{vOR}, v{vOP}
            s_lshl_b32 s{sT0}, s{sW}, 7
            v_add_u32 v{vOR}, s{sT0}, v{vOR}
            v_and_b32 v{vT+2}, 15, v{vL}
            v_lshlrev_b32 v{vOW}, 5, v{vT+2}
            v_lshl_or_b32 v{vOW}, v{vT}, 4, v{vOW}
            v_lshl_or_b32 v{vOW}, v{vT+1}, 9, v{vOW}
            s_mul_i32 s{sT0}, s{sW}, {L_OSTR}
            v_add_u32 v{vOW}, s{sT0}, v{vOW}
            v_mul_u32_u24 v{vWo0}, {4*1152}, v{vWo0}
            v_add_u32 v{vWo0}, v{vWo0}, v{vWo1}
            """)
            if self.p2:
                a(f"""s_cmp_lt_u32 s{sW}, s{sS}
                s_addc_u32 s{sT0}, s{sS}, 0
                s_lshl_b32 s{sT0}, s{sT0}, 7""")
            else: a(f"s_lshl_b32 s{sT0}, s{sW}, 7")
            a(f"""
            v_add_u32 v{vWo0}, s{sT0}, v{vWo0}
            v_add_u32 v{vWo1}, s{sT1}, v{vWo0}
            v_and_b32 v{vX}, 0xff, v{vK}
            v_lshrrev_b32 v{vT}, 1, v{vK}
            v_and_b32 v{vT}, 0x100, v{vT}
            v_or_b32 v{vX}, v{vX}, v{vT}
            """)
        T(NB1+1, setup1)
        def touch():
            for k, c in enumerate(self.touch):
                b = {'v': SV, 'w': SWO, 'o': SOUT}[c]
                a(f"s_load_dword s{4+k}, s[{b}:{b+1}], 0")
        if self.touch: T(NB1+self.ntouch, touch)
        assert NQG >= NB1+1
        nqg = 2 if self.wqw == 128 else 8
        qb = vWQB if nqg == 2 else vKV + 96
        assert nqg == 2 or NQ < 24
        qg = [f"buffer_load_dwordx4 {vr(qb+4*k)}, v{vLin}, {srd(SWS)}, s{sQg if k < 4 else sQg2} offen offset:{1024*(k%4)} sc1" for k in range(nqg)]
        def t_qg():
            if self.roles:
                l = self.role(1)
                for k in range(nqg): self.vm(f"qg{k}", qg[k], 1)
                a(f"{l}:")
                return
            self.vm_masked(1, "-1", [(f"qg{k}", qg[k]) for k in range(nqg)])
        T(NQG, t_qg)
        def t_q():
            if not self.roles: self.wait(f"qg{nqg-1}")
            l = self.only(1)
            if self.roles: self.wait(f"qg{nqg-1}", 1)
            self.stamp("qchk")
            self.check_retry([qb+4*k+3 for k in range(nqg)], lambda: a("\n".join(qg)), die=(vT+4 if self.loc == 'q' else None))
            self.stamp("qok")
            if self.loc == 'q':
                a(f"""v_cmp_ne_u32 vcc, s{sXcc}, v{vT+4}
                v_cmp_ne_u32_e64 s[{sCm}:{sCm+1}], s{sXcc}, v{vT+5}
                s_or_b64 vcc, vcc, s[{sCm}:{sCm+1}]
                s_cselect_b32 s{sLoc}, 0, 1
                v_mov_b32 v{vT+4}, s{sLoc}
                ds_write_b32 v{vLin}, v{vT+4} offset:{L_FL}""")
            self.unpack([qb+4*k for k in range(nqg)])
            for (x, y) in ([(0,1)] if nqg == 2 else [(0,1),(2,3),(4,5),(6,7),(0,2),(4,6),(0,4)]):
                for h in (0, 2):
                    a(f"v_pk_add_f32 v[{qb+4*x+h}:{qb+4*x+h+1}], v[{qb+4*x+h}:{qb+4*x+h+1}], v[{qb+4*y+h}:{qb+4*y+h+1}]")
            a(f"""
            v_lshlrev_b32 v{vT+2}, 3, v{vL}
            v_cvt_pk_bf16_f32 v{vT}, v{qb}, v{qb+1}
            v_cvt_pk_bf16_f32 v{vT+1}, v{qb+2}, v{qb+3}
            ds_write_b64 v{vT+2}, v[{vT}:{vT+1}] offset:{L_QB}
            s_waitcnt lgkmcnt(0)
            {l}:
            {'' if self.diag & 8 else 's_barrier'}""")
            self.stamp("bar2")
            if self.loc is not None: a(f"v_mov_b32 v{vT+1}, 0\nds_read_b32 v{vT}, v{vT+1} offset:{L_FL}")
            a(f"""ds_read_b128 {vr(vBB)}, v{vX} offset:{L_QB}
            s_waitcnt lgkmcnt(0)""")
            if self.loc is not None:
                a(f"v_readfirstlane_b32 s{sLoc}, v{vT}")
                if self.stamps: a(f"v_writelane_b32 v{vStamp}, s{sLoc}, 28")
            for i in range(4): a(f"v_cndmask_b32_e64 v{vBA+i}, 0, v{vBB+i}, s[{sA}:{sA+1}]")
            for i in range(4): a(f"v_cndmask_b32_e64 v{vBB+i}, v{vBB+i}, 0, s[{sA}:{sA+1}]")
        T(NQ, t_q)
        u = 0; n = NQ
        while u < 16:
            avail = (n - R + 1) // 2
            us = list(range(u, min(16, avail, u + (self.qk_per_step if n > NQ else 1))))
            if us:
                def f(us=us):
                    if self.diag & 4: return
                    for x in us: self.qk_mfma(x)
                    self.qk_fin(us)
                T(n, f); u = us[-1] + 1
            n += 1
        nsm = n - 1
        assert nsm == 31 + R, nsm
        T(nsm, self.softmax_max)
        T(nsm, lambda: self.stamp("smax"))
        T(nsm, lambda: self.softmax_p([0,1,2,3]))
        T(nsm+1, lambda: self.softmax_p([4,5,6,7,8,9]))
        T(nsm+2, lambda: self.softmax_p([10,11,12,13,14,15]))
        T(nsm+2, self.ml_publish)
        j = 0; n = nsm + 3
        pvlast = None
        while j < 32:
            avail = n - R - 32 + 1
            js = list(range(j, min(32, avail, j + self.pv_per_step)))
            if js:
                def f(js=js):
                    if self.diag & 16: return
                    pend = None
                    for x in js:
                        m = self.pv(x)
                        if pend: pend()
                        pend = m
                    pend()
                T(n, f); j = js[-1] + 1
            n += 1
        nlast = n - 1
        assert nlast == 63 + R
        NML = self.NML
        mg = [f"buffer_load_dwordx3 {vr(vWQB+4*k,3)}, v{vLin}, {srd(SWS)}, s{sMLg} offen offset:{1024*k} sc1" for k in range(2)]
        def mlg():
            if self.roles:
                l = self.role(2)
                for k in range(2): self.vm(("mlg0","mlg")[k], mg[k], 2)
                a(f"{l}:")
                return
            self.vm_masked(2, "-1", [("mlg0", mg[0]), ("mlg", mg[1])])
        def t_ml():
            mlg()
        T(NML, t_ml)
        def t_mlchk():
            if not self.roles: self.wait("mlg")
            l = self.only(2)
            if self.roles: self.wait("mlg", 2)
            self.stamp("mlchk")
            self.check_retry([vWQB+2, vWQB+6], lambda: a("\n".join(mg)))
            m0, l0, m1, l1 = vWQB, vWQB+1, vWQB+4, vWQB+5
            if self.mlclean:
                a(f"s_mov_b64 exec, s[{sExF}:{sExF+1}]")
                for k in range(2): self.vm("mlcl", f"buffer_store_dwordx3 {vr(vWQB+4*k,3)}, v{vLin}, {srd(SWS)}, s{sMLg} offen offset:{1024*k} sc1", 2)
                a("s_mov_b64 exec, -1")
            x0, x1 = vWQB+8, vWQB+9
            a(f"v_mov_b32 v{x0}, v{m0}\nv_mov_b32 v{x1}, v{m1}")
            self.wave_allred2("v_max_f32", x0, x1)
            a(f"""v_sub_f32 v{m0}, v{m0}, v{x0}
            v_sub_f32 v{m1}, v{m1}, v{x1}
            v_exp_f32 v{m0}, v{m0}
            v_exp_f32 v{m1}, v{m1}
            s_nop 0
            v_mul_f32 v{x0}, v{m0}, v{l0}
            v_mul_f32 v{x1}, v{m1}, v{l1}""")
            self.wave_allred2("v_add_f32", x0, x1)
            a(f"""v_rcp_f32 v{x0}, v{x0}
            v_rcp_f32 v{x1}, v{x1}
            s_nop 0
            v_mul_f32 v{m0}, v{m0}, v{x0}
            v_mul_f32 v{m1}, v{m1}, v{x1}
            s_mov_b64 exec, s[{sExF}:{sExF+1}]
            ds_write_b32 v{vFW}, v{m0} offset:{L_F}
            ds_write_b32 v{vFW}, v{m1} offset:{L_F+32}
            s_mov_b64 exec, -1
            {'s_mov_b64 vcc, -1' if self.mlclean else ''}
            {l}:""")
        T(NML+R, t_mlchk)
        assert NML + R < nlast and NML > nsm + 3

        if self.fb:
            fb = dict(pub=(20,62,2), chk=(22,32,42,52), bias=0, tb=16, tt=16, gt=6, maxt=5, boost=10, rec=False, lg=8, ps=0, pfl='sc1', pw=1, mode='glob'); fb.update(self.fb)
            if fb['mode'] == 'loc': fb['pfl'] = ''; fb['lg'] = 2
            assert self.ctl and self.ctl[0] > NQ and NB1+2 < NQ
            def fbsetup():
                if fb['mode'] == 'loc':
                    a(f"""s_lshl_b32 s{sPgL}, s{sXcc}, 10
                    s_add_u32 s{sPgL}, s{sPgL}, {PGBOX}
                    s_lshr_b32 s{sPgT}, s2, 3
                    s_lshl_b32 s{sPgT}, s{sPgT}, 2
                    s_add_u32 s{sPgS}, s{sPgL}, s{sPgT}
                    s_mov_b32 s7, {CW}""")
                else:
                    a(f"""s_mov_b32 s{sPgL}, {PGBOX}
                    s_lshl_b32 s{sPgT}, s{sG}, {fb['lg']}
                    s_add_u32 s{sPgS}, s{sPgL}, s{sPgT}
                    s_cmp_eq_u32 s{sS}, {fb['ps']}
                    s_cselect_b32 s7, {CW}, 99""")
                a(f"""
                s_add_u32 s{sPgV}, s{sTag}, {fb['pub'][0]}
                v_mov_b32 v{vCA}, {L_CTL}
                v_lshlrev_b32 v{vCA+1}, 2, v{vL}
                s_mov_b32 s8, {(1 << min(32, fb['pw'])) - 1:#x}
                s_mov_b32 s9, {((1 << fb['pw']) - 1) >> 32:#x}
                v_mov_b32 v{vCtl}, 0
                v_mov_b32 v{vCtl+1}, 0
                s_mov_b32 s{sBU}, 0
                s_mov_b32 s{sTU}, 0
                ds_write_b64 v{vCA}, v[{vCtl}:{vCtl+1}]""")
                if self.xb:
                    lo = sum((v & 255) << (8*i) for i, v in enumerate(self.xb[:4])); hi = sum((v & 255) << (8*i) for i, v in enumerate(self.xb[4:]))
                    a(f"""s_mov_b32 s16, {lo:#x}
                    s_mov_b32 s17, {hi:#x}
                    s_lshl_b32 s{sPgT}, s{sXcc}, 3
                    s_lshr_b64 s[16:17], s[16:17], s{sPgT}
                    s_sext_i32_i8 s16, s16""")
            T(NB1+2, fbsetup)
            def pub(n):
                l = self.lab("PUB")
                a(f"s_cmp_lg_u32 s{sW}, {CW}\ns_cbranch_scc1 {l}\nv_mov_b32 v{vVal}, s{sPgV}")
                if fb['pw'] == 1:
                    a(f"s_cmp_eq_u32 s{sW}, s7\ns_cselect_b64 exec, 1, 0")
                    self.vm("pgst", f"buffer_store_dword v{vVal}, off, {srd(SWS)}, s{sPgS} {fb['pfl']}", CW)
                else:
                    a(f"s_cmp_eq_u32 s{sW}, s7\ns_cselect_b64 exec, s[8:9], 0")
                    self.vm("pgst", f"buffer_store_dword v{vVal}, v{vCA+1}, {srd(SWS)}, s{sPgS} offen {fb['pfl']}", CW)
                a(f"s_add_u32 s{sPgV}, s{sPgV}, {fb['pub'][2]}")
                if n in fb['chk']:
                    a(f"s_mov_b64 exec, 0xffffffff\nv_lshlrev_b32 v{vSamp}, {fb['lg']}, v{vL}".replace("s_mov_b64 exec, 0xffffffff", "s_mov_b32 exec_lo, -1"))
                    self.vm(f"samp{n}", f"buffer_load_dword v{vSamp}, v{vSamp}, {srd(SWS)}, s{sPgL} offen sc1", CW)
                a(f"s_mov_b64 exec, -1\n{l}:")
            pubs = list(range(*fb['pub']))
            assert all(c in pubs for c in fb['chk'])
            for n in pubs: tasks[n].insert(0, lambda n=n: pub(n))
            def dec(c, i):
                n = c + R + 1
                l = self.only(CW)
                self.wait(f"samp{c}", CW)
                a(f"""s_add_u32 s{sPgT}, s{sTag}, {c}
                v_subrev_u32 v{vSamp}, s{sPgT}, v{vSamp}
                v_add_u32 v{vVal}, 64, v{vSamp}
                v_cmp_gt_u32_e64 s[4:5], 0x80, v{vVal}
                v_med3_i32 v{vSamp}, v{vSamp}, -12, 12
                v_cndmask_b32_e64 v{vSamp}, -4, v{vSamp}, s[4:5]""".replace("0x80, v", "s6, v").replace("v_add_u32 v%d, 64" % vVal, "s_movk_i32 s6, 0x80\nv_add_u32 v%d, 64" % vVal))
                for ctl in ("quad_perm:[1,0,3,2]", "quad_perm:[2,3,0,1]", "row_half_mirror", "row_ror:8"):
                    self.dpp("v_add_u32", vSamp, vSamp, vSamp, ctl)
                a(f"""v_readlane_b32 s4, v{vSamp}, 0
                v_readlane_b32 s5, v{vSamp}, 16
                s_add_i32 s4, s4, s5""")
                if fb['rec'] and self.stamps: a(f"v_writelane_b32 v{vStamp}, s4, {20+i}")
                bias = fb['bias'][i] if isinstance(fb['bias'], (list, tuple)) else fb['bias']
                if self.xb: a(f"s_add_i32 s4, s4, s16")
                a(f"""s_add_i32 s4, s4, {bias}
                s_cmp_gt_i32 s4, {fb['tb']}
                s_cselect_b32 s{sBU}, {n + 1 + fb['boost']}, 0
                s_sub_i32 s5, {-fb['tt']}, s4
                s_max_i32 s5, s5, 0
                s_mul_i32 s5, s5, {fb['gt']}
                s_add_u32 s5, s5, 63
                s_lshr_b32 s5, s5, 6
                s_min_u32 s5, s5, {fb['maxt']}
                s_add_u32 s{sTU}, s5, {n + 1}
                s_waitcnt lgkmcnt(0)
                v_mov_b32 v{vCtl}, s{sBU}
                v_mov_b32 v{vCtl+1}, s{sTU}
                ds_write_b64 v{vCA}, v[{vCtl}:{vCtl+1}]
                {l}:""")
            for i, c in enumerate(fb['chk']): T(c + R + 1, lambda c=c, i=i: dec(c, i))
            def rd(n):
                if n > self.ctl[0]: a(f"s_waitcnt lgkmcnt(0)\nv_readfirstlane_b32 s{sBU}, v{vCtl}\nv_readfirstlane_b32 s{sTU}, v{vCtl+1}")
                if n < min(self.ctl[1], 64) - 1: a(f"ds_read_b64 v[{vCtl}:{vCtl+1}], v{vCA}")
            for n in range(self.ctl[0], min(self.ctl[1], 64)): T(n, lambda n=n: rd(n))
        seq = [self.item(k) for k in S]
        wos = self.wosched if self.wosched is not None else {64+k: 1 for k in range(self.wo_early)}
        upto = {n: n for n in range(kf, nlast+1)}
        for nb, B in ((NB1, self.boost1), (NQ, self.boost2), (NML+R, self.boost3)):
            for k in range(B+1): upto[nb+k] = max(upto[nb+k], nb+B)
        if self.ramp:
            n0, rate = self.ramp
            wos = {}; prev = 0
            for n in range(n0, nlast+1):
                t = n0 - 1 + int((n - n0 + 1)*rate)
                upto[n] = t
                k = min(8, max(0, t - 63)); wos[n] = k - prev; prev = k
        nxt, nwo = kf, 64
        for n in range(kf, nlast+1):
            if self.ctl and self.ctl[0] <= n < self.ctl[1] and n < 64:
                if (self.xt or self.fb) and n - R + 1 < 64: self.cwait(seq[n + 7 - R], sTU, n, False)
                self.cwait(seq[n + 6 - R], sBU, n, True)
                while nxt <= min(63, upto[n]): self.issue(S[nxt+6]); nxt += 1
                self.wait(seq[n + 6 - R])
            else:
                if n - R < 64: self.wait(seq[n + 6 - R])
                while nxt <= min(63, upto[n]): self.issue(S[nxt+6]); nxt += 1
            if n == self.wobar: a("s_barrier")
            for k in range(wos.get(n, 0)): self.issue(nwo); nwo += 1
            if n == nlast: self.stamp("vlast")
            if n >= 20: self.stamp(f"s{n}")
            for f in tasks[n]: f()
        if self.wolate == 0:
            for n in range(nwo, 72): self.issue(n)
        if self.diag & 128:
            for k in (0, 1, 2, 3, 7):
                self.wait(f"it{64+k}"); self.stamp(f"w{k}")
        a(f"ds_write_b128 v{vOW}, {vr(vO)} offset:{L_OP}")
        if self.wolate == 1:
            for n in range(nwo, 72): self.issue(n)
        a("s_waitcnt lgkmcnt(0)\ns_barrier")
        self.stamp("bar3")
        a(f"""ds_read_b128 {vr(vT)}, v{vOR} offset:{L_OP}
        ds_read_b32 v{vT+4}, v{vFR} offset:{L_F}
        s_waitcnt lgkmcnt(0)""")
        for r in range(4): a(f"v_mul_f32 v{vT+r}, v{vT+r}, v{vT+4}")
        for ctl in ("quad_perm:[1,0,3,2]", "quad_perm:[2,3,0,1]", "row_half_mirror"):
            for r in range(4): self.dpp("v_add_f32", vT+r, vT+r, vT+r, ctl)
        self.pack(vT)
        if self.diag & 1:
            self.stamp("opre"); a("s_waitcnt vmcnt(0)"); self.stamp("woarr")
        a(f"s_mov_b64 exec, s[{sExO}:{sExO+1}]")
        self.store_fl("opub", f"buffer_store_dwordx4 {vr(vT)}, v{vOP}, {srd(SWS)}, s{sOs} offen", None, self.ost)
        a("s_mov_b64 exec, -1")
        if self.diag & 1:
            a("s_waitcnt vmcnt(0)"); self.stamp("stack")
        if self.wolate == 2:
            for n in range(nwo, 72): self.issue(n)
        if self.ogwait: self.wait("it71" if self.ogwait is True else f"it{64+self.ogwait}")
        g0 = vT + 8
        og = f"buffer_load_dwordx4 {vr(g0)}, v{vOG}, {srd(SWS)}, s{sOg} offen {self.old}"
        self.vm("og", og)
        if self.p2:
            for r in range(4): a(f"v_mov_b32 v{vKV+64+r}, 0")
        if self.pstr > 32:
            a(f"""v_lshrrev_b32 v{vK}, 1, v{vL}
            v_lshlrev_b32 v{vK}, {5 + {64: 1, 128: 2, 256: 3, 512: 4}[self.pstr]}, v{vK}
            v_and_b32 v{vX}, 16, v{vLin}
            v_or_b32 v{vK}, v{vK}, v{vX}""")
        if self.prep: a(f"s_add_u32 s{sPg2}, s{sPg}, {self.prep}")
        vG = vK if self.pstr > 32 else vLin
        self.stamp("opub")
        if self.diag & 256:
            for nm in ("it66", "it67", "it71", "opub"):
                self.wait(nm); self.stamp("a_"+nm)
        a("s_waitcnt vmcnt(0)")
        self.stamp("og1")
        if self.stamps and self.diag & 512: a(f"v_writelane_b32 v{vStamp}, s{sCnt}, 25")
        self.check_retry([g0+3], lambda: a(og))
        if self.stamps and self.diag & 512: a(f"v_writelane_b32 v{vStamp}, s{sCnt}, 26")
        self.stamp("ogok")
        self.unpack([g0])
        for ctl in ("quad_perm:[1,0,3,2]", "quad_perm:[2,3,0,1]", "row_half_mirror"):
            for r in range(4): self.dpp("v_add_f32", g0+r, g0+r, g0+r, ctl)
        for r in range(4): a(f"v_cvt_pk_bf16_f32 v{g0+r}, v{g0+r}, v{g0+r}")
        pend = None
        for i in range(4):
            A = vA0 if i % 2 == 0 else vA1
            self.build_A(A, g0+i)
            if pend: pend()
            def m(i=i, A=A):
                self.mfma(vD0, A, vKV + 4*i, None if i == 0 else vD0)
                self.mfma(vD1, A, vKV + 16 + 4*i, None if i == 0 else vD1)
            pend = m
        pend()
        for r in range(4): a(f"v_permlane32_swap_b32 v{vD0+r}, v{vD1+r}")
        for r in range(4): self.dpp("v_add_f32", vD0+r, vD1+r, vD0+r, "row_ror:8")
        if self.p2:
            a(f"""s_mov_b64 exec, s[{sExP}:{sExP+1}]
            ds_write_b128 v{vPW}, {vr(vD0)}""")
            def oclean():
                a(f"s_mov_b64 exec, s[{sExO}:{sExO+1}]")
                self.vm("oclean", f"buffer_store_dwordx4 {vr(vT)}, v{vOP}, {srd(SWS)}, s{sOs} offen sc1")
            if self.oclean == 1: oclean()
            a(f"""s_mov_b64 exec, -1
            s_waitcnt lgkmcnt(0)
            s_barrier""")
            if self.oclean == 2: oclean(); a("s_mov_b64 exec, -1")
            if self.oclean == 3:
                l = self.lab("OC")
                a(f"s_cmp_eq_u32 s{sW}, {self.redw}\ns_cbranch_scc1 {l}")
                oclean(); a(f"s_mov_b64 exec, -1\n{l}:")
            self.stamp("bar4")
            l = self.only(self.redw)
            r0 = vKV + 32
            if self.rdm: a("s_mov_b32 exec_hi, 0")
            for k in range(8): a(f"ds_read_b128 {vr(r0+4*k)}, v{vPR} offset:{256*k}")
            for k in range(1, 8):
                a(f"s_waitcnt lgkmcnt({7-k})")
                for h in (0, 2):
                    a(f"v_pk_add_f32 v[{r0+h}:{r0+h+1}], v[{r0+h}:{r0+h+1}], v[{r0+4*k+h}:{r0+4*k+h+1}]")
            self.pack(r0)
            if self.xtag:
                a(f"v_bitop3_b32 v{r0+3}, v{r0+3}, v{r0}, v{r0+1} bitop3:0x96")
                a(f"v_xor_b32 v{r0+3}, v{r0+3}, v{r0+2}")
            if self.pubat:
                assert self.xtag and not self.prep and not self.rdm
                a(f"s_mov_b32 exec_lo, 0\nv_mov_b32 v{r0}, v{r0+2}\nv_mov_b32 v{r0+1}, v{r0+3}\ns_mov_b32 exec_lo, -1")
                if self.pubat.startswith("st"): self.vm("ppub", f"buffer_store_dwordx2 {vr(r0,2)}, v{vPP}, {srd(SWS)}, s{sPs} offen {self.pubat[2:]}")
                else: self.vm("ppub", f"buffer_atomic_swap_x2 {vr(r0,2)}, v{vPP}, {srd(SWS)}, s{sPs} offen {self.pubat}")
            else:
                if not self.prep: a("s_mov_b32 exec_hi, 0")
                self.vm("ppub", f"buffer_store_dwordx4 {vr(r0)}, v{vPP}, {srd(SWS)}, s{sPs} offen {self.pst}")
            if self.oclean == 3: oclean()
            a(f"s_mov_b64 exec, -1\n{l}:")
        else:
            self.pack(vD0)
            a(f"s_mov_b64 exec, s[{sExP}:{sExP+1}]")
            self.vm("ppub", f"buffer_store_dwordx4 {vr(vD0)}, v{vPP}, {srd(SWS)}, s{sPs} offen sc1")
            a("s_mov_b64 exec, -1")
        self.stamp("ppub")
        a(f"""s_cmp_lg_u32 s{sW}, {self.consw}
        s_cbranch_scc1 L_fin
        s_cmp_ge_u32 s{sCi}, 72
        s_cbranch_scc1 L_fin""")
        p0 = vKV + 64
        npg = 1 if self.p2 else 4
        def pg():
            if self.pga:
                for r in range(4): a(f"v_mov_b32 v{p0+r}, 0")
                a(f"buffer_atomic_add_x2 v[{p0+2}:{p0+3}], v{vG}, {srd(SWS)}, s{sPg} offen offset:8 {self.pga}")
                a(f"buffer_atomic_add_x2 v[{p0}:{p0+1}], v{vG}, {srd(SWS)}, s{sPg} offen {self.pga}")
                return
            for t in range(npg): a(f"buffer_load_dwordx4 {vr(p0+4*t)}, v{vG}, {srd(SWS)}, s{sPg} offen offset:{t*1024} {self.pld}")
        if self.p2: a(f"s_mov_b64 exec, s[{sExC}:{sExC+1}]")
        if self.pgn:
            self.tail_pipe(p0, vG)
            return self.finish()
        pg()
        a("s_waitcnt vmcnt(0)")
        self.stamp("pg1")
        self.check_retry([vT+4] if self.xtag else [p0+3+4*t for t in range(npg)], pg, base=(f"s[{sExC}:{sExC+1}]" if self.p2 else "-1"), pre=(
            (lambda: a(f"v_bitop3_b32 v{vT+4}, v{p0+3}, v{p0}, v{p0+1} bitop3:0x96\nv_xor_b32 v{vT+4}, v{vT+4}, v{p0+2}")) if self.xtag else None))
        if self.p2: a("s_mov_b64 exec, -1")
        if self.stamps and self.diag & 512: a(f"v_writelane_b32 v{vStamp}, s{sCnt}, 27")
        self.stamp("pgok")
        self.unpack([p0+4*t for t in range(npg)])
        for (x, y) in ([] if self.p2 else [(0,1),(2,3),(0,2)]):
            for h in (0, 2):
                a(f"v_pk_add_f32 v[{p0+4*x+h}:{p0+4*x+h+1}], v[{p0+4*x+h}:{p0+4*x+h+1}], v[{p0+4*y+h}:{p0+4*y+h+1}]")
        a(f"""v_permlane32_swap_b32 v{p0}, v{p0+2}
        v_permlane32_swap_b32 v{p0+1}, v{p0+3}
        v_add_f32 v{p0}, v{p0}, v{p0+2}
        v_add_f32 v{p0+1}, v{p0+1}, v{p0+3}
        v_permlane16_swap_b32 v{p0}, v{p0+1}
        v_add_f32 v{p0}, v{p0}, v{p0+1}""")
        for ctl in ("row_ror:8", "row_ror:4", "quad_perm:[2,3,0,1]"):
            self.dpp("v_add_f32", p0, p0, p0, ctl)
        a(f"""v_cvt_pk_bf16_f32 v{p0}, v{p0}, v{p0}
        s_mov_b64 exec, s[{sExOut}:{sExOut+1}]
        buffer_store_short v{p0}, v{vOut}, {srd(SOUT)}, s{sOutO} offen {self.ofl}
        s_cmp_lg_u32 s{sCi}, 0
        s_cbranch_scc1 L_fin2
        v_mov_b32 v{vT}, s{sTag}
        s_mov_b64 exec, 1
        buffer_store_dword v{vT}, off, {srd(SWS)}, s{sEoff} {self.efl}
        L_fin2:
        s_mov_b64 exec, -1""")
        return self.finish()

    def tail_pipe(self, p0, vG):
        a = self.a
        N, spec = self.pgn
        Q = [p0 + 4 + 4*k for k in range(N)]
        T = vT
        miss = sCm
        def ld(q):
            so = sPg2 if (self.prep and Q.index(q) % 2) else sPg
            if self.pga:
                for r in range(4): a(f"v_mov_b32 v{q+r}, 0")
                a(f"buffer_atomic_add_x2 v[{q+2}:{q+3}], v{vG}, {srd(SWS)}, s{so} offen offset:8 {self.pga}")
                a(f"buffer_atomic_add_x2 v[{q}:{q+1}], v{vG}, {srd(SWS)}, s{so} offen {self.pga}")
            else:
                a(f"buffer_load_dwordx4 {vr(q)}, v{vG}, {srd(SWS)}, s{so} offen {self.pld}")
        def comp():
            a(f"""v_perm_b32 v{T+3}, v{p0+1}, v{p0}, s{sUp0}
            v_mov_b32 v{T}, v{p0}
            v_mov_b32 v{T+2}, v{p0+2}
            v_perm_b32 v{T+3}, v{p0+2}, v{T+3}, s{sUp1}
            v_mov_b32 v{T+1}, v{p0+1}
            v_permlane32_swap_b32 v{T}, v{T+2}
            v_permlane32_swap_b32 v{T+1}, v{T+3}
            v_add_f32 v{T}, v{T}, v{T+2}
            v_add_f32 v{T+1}, v{T+1}, v{T+3}
            v_permlane16_swap_b32 v{T}, v{T+1}
            v_add_f32 v{T}, v{T}, v{T+1}""")
            for ctl in ("row_ror:8", "row_ror:4", "quad_perm:[2,3,0,1]"):
                self.dpp("v_add_f32", T, T, T, ctl)
            a(f"v_cvt_pk_bf16_f32 v{T}, v{T}, v{T}")
        w = (2 if self.pga else 1)
        a(f"s_mov_b64 s[{miss}:{miss+1}], exec")
        for k in range(N):
            ld(Q[k])
            if spec == 2 and k < N-1:
                a("s_mov_b64 exec, -1"); comp(); a(f"s_mov_b64 exec, s[{miss}:{miss+1}]")
        a("L_poll:")
        for k in range(N):
            q = Q[k]; nx = self.lab("PN")
            a(f"s_waitcnt vmcnt({w*(N-1)})")
            if self.xtag: a(f"v_bitop3_b32 v{T+4}, v{q+3}, v{q}, v{q+1} bitop3:0x96\nv_xor_b32 v{T+4}, v{T+4}, v{q+2}")
            a(f"""v_cmp_eq_u32 vcc, s{sTag}, v{T+4 if self.xtag else q+3}
            s_andn2_b64 s[{miss}:{miss+1}], s[{miss}:{miss+1}], vcc
            s_mov_b64 exec, vcc""")
            if k == 0 and self.stamps and 0: pass
            for r in range(3): a(f"v_mov_b32 v{p0+r}, v{q+r}")
            if spec:
                a(f"""s_cbranch_scc0 {nx}
                s_mov_b64 exec, s[{miss}:{miss+1}]""")
                ld(q)
                a(f"{nx}:\ns_mov_b64 exec, -1")
                comp()
                a(f"""s_cmp_eq_u64 s[{miss}:{miss+1}], 0
                s_cbranch_scc1 L_got
                s_mov_b64 exec, s[{miss}:{miss+1}]""")
            else:
                a(f"""s_cbranch_scc0 L_all
                s_mov_b64 exec, s[{miss}:{miss+1}]""")
                ld(q)
        a(f"""s_sub_u32 s{sCnt}, s{sCnt}, 1
        s_cbranch_scc0 L_poll""")
        if not spec: a("L_all:")
        a("s_mov_b64 exec, -1")
        if not spec: comp()
        a("L_got:")
        if self.stamps and self.diag & 512: a(f"v_writelane_b32 v{vStamp}, s{sCnt}, 27")
        self.stamp("pgok")
        a(f"""s_mov_b64 exec, s[{sExOut}:{sExOut+1}]
        buffer_store_short v{T}, v{vOut}, {srd(SOUT)}, s{sOutO} offen {self.ofl}
        s_cmp_lg_u32 s{sCi}, 0
        s_cbranch_scc1 L_fin2
        v_mov_b32 v{T+1}, s{sTag}
        s_mov_b64 exec, 1
        buffer_store_dword v{T+1}, off, {srd(SWS)}, s{sEoff} {self.efl}
        L_fin2:
        s_mov_b64 exec, -1
        s_waitcnt vmcnt(0)""")

    def finish(self):
        a = self.a
        a("L_fin:")
        if self.amp:
            self.stamp("end")
            a(f"""s_cmp_lg_u32 s2, {self.amp[2] if len(self.amp) > 2 else 0}
            s_cbranch_scc1 L_end
            s_cmp_lg_u32 s{sW}, {self.amp[3] if len(self.amp) > 3 else 0}
            s_cbranch_scc1 L_end
            s_memrealtime s[4:5]
            s_waitcnt lgkmcnt(0)
            s_sub_u32 s6, s16, s96
            s_min_u32 s6, s6, 8000
            s_mul_i32 s6, s6, {int(self.amp[1]*16)}
            s_lshr_b32 s6, s6, 4
            s_mov_b32 s7, 2000000
            L_spin:
            s_memrealtime s[8:9]
            s_waitcnt lgkmcnt(0)
            s_sub_u32 s8, s8, s4
            s_cmp_ge_u32 s8, s6
            s_cbranch_scc1 L_end
            s_sub_u32 s7, s7, 1
            s_cbranch_scc0 L_spin
            s_branch L_end""")
        if self.stamps:
            a("s_waitcnt vmcnt(0)")
            self.stamp("end")
            a(f"""s_lshl_b32 s{sT0}, s2, 3
            s_add_u32 s{sT0}, s{sT0}, s{sW}
            s_lshl_b32 s{sT0}, s{sT0}, 7
            s_add_u32 s{sT0}, s{sT0}, {STAMP}
            v_lshlrev_b32 v{vT}, 2, v{vL}
            s_mov_b32 exec_hi, 0
            buffer_store_dword v{vStamp}, v{vT}, {srd(SWS)}, s{sT0} offen
            s_waitcnt vmcnt(0)""")
        a("L_end:\ns_endpgm")
        lines, nn = pad(self.L)
        self.nops = nn
        return "\n".join(lines) + "\n"

    def wave_allred2(self, op, x, y):
        for ctl in ("quad_perm:[1,0,3,2]", "quad_perm:[2,3,0,1]", "row_half_mirror", "row_ror:8"):
            self.dpp(op, x, x, x, ctl); self.dpp(op, y, y, y, ctl)
        t, u = vT, vT+1
        for sw in ("v_permlane16_swap_b32", "v_permlane32_swap_b32"):
            self.a(f"""v_mov_b32 v{t}, v{x}
            v_mov_b32 v{u}, v{y}
            {sw} v{x}, v{t}
            {sw} v{y}, v{u}
            {op} v{x}, v{x}, v{t}
            {op} v{y}, v{y}, v{u}""")

def header():
    ref = open("concat_heads__gqa_block_cached__gqa_block_cached__decode.s.ref").read().split("\n")
    out = []
    for l in ref:
        if l.startswith("; @launch"): break
        out.append(l)
    return "\n".join(out) + "\n"

def gen(**kw):
    g = G(**kw)
    body = g.gen()
    txt = wrap(body, 256, 512, LDS_BYTES, vgpr=(252 if g.fb else NVGPR), header=header())
    return txt, g

if __name__ == "__main__":
    kw = eval(sys.argv[2]) if len(sys.argv) > 2 else {}
    txt, g = gen(**kw)
    open(sys.argv[1], "w").write(txt)
    print("nops", g.nops, "lines", txt.count("\n"), g.stamp_names)
```
